```python
import torch

def _softmax(x, axis=-1):
    return torch.softmax(x, dim=axis)
def _gelu(x):
    return torch.nn.functional.gelu(x, approximate="tanh")
def _silu(x):
    return torch.nn.functional.silu(x)
def _sigmoid(x):
    return torch.sigmoid(x)
def _layernorm(x, axis=-1, eps=1e-5):
    m = x.mean(dim=axis, keepdim=True)
    v = x.var(dim=axis, keepdim=True, unbiased=False)
    return (x - m) / torch.sqrt(v + eps)
def _scatter_add(tgt, idx, src, axis=0):
    return tgt.clone().index_add_(axis, idx, src)
def _segment_sum(src, seg, n):
    out = torch.zeros((n,) + src.shape[1:], dtype=src.dtype)
    return out.index_add_(0, seg, src)
def _pad(x, pw):
    flat = tuple(v for pair in reversed(pw) for v in pair)
    return torch.nn.functional.pad(x, flat)

kernel_name = 'sequential_preLN__sliding_local_dilated__glu_gated_swiglu__prompt'

def setup_inputs():

    _w = (lambda a: (lambda t: t.to(torch.bfloat16) if t.is_floating_point() else t)(torch.as_tensor(a)))
    def _A_setup():
        B, S, D = 1, 2048, 640
        return {
            "x": _w((lambda *s: torch.randn(*s, dtype=torch.bfloat16) * 0.05)(B, S, D)),
            "wqkv": _w((lambda *s: torch.randn(*s, dtype=torch.bfloat16) * 0.05)(D, 3 * D)),
            "wo": _w((lambda *s: torch.randn(*s, dtype=torch.bfloat16) * 0.05)(D, D)),
        }
    _A_in = _A_setup()

    def _B_setup():
        B, S, D, F = 1, 2048, 640, 1536
        return {
            "x": _w((lambda *s: torch.randn(*s, dtype=torch.bfloat16) * 0.05)(B, S, D)),
            "w1": _w((lambda *s: torch.randn(*s, dtype=torch.bfloat16) * 0.8)(D, F) * (2.0 / D) ** 0.5),
            "w3": _w((lambda *s: torch.randn(*s, dtype=torch.bfloat16) * 0.8)(D, F) * (2.0 / D) ** 0.5),
            "w2": _w((lambda *s: torch.randn(*s, dtype=torch.bfloat16) * 0.8)(F, D) * (2.0 / F) ** 0.5),
        }
    _B_in = _B_setup()

    return {
        "A_x": _A_in["x"],
        "A_wqkv": _A_in["wqkv"],
        "A_wo": _A_in["wo"],
        "B_x": _B_in["x"],
        "B_w1": _B_in["w1"],
        "B_w3": _B_in["w3"],
        "B_w2": _B_in["w2"],
    }

def reference(A_x, A_wqkv, A_wo, B_x, B_w1, B_w3, B_w2):
    def _A_ref(x, wqkv, wo):
        B, S, D = x.shape
        H = 32; Dh = D // H
        W, dil = 8, 2
        qkv = (lambda x, *d: x.permute(*d))((x @ wqkv).reshape(B, S, 3, H, Dh), 2, 0, 3, 1, 4)
        q, k, v = qkv[0], qkv[1], qkv[2]
        scale = Dh ** -0.5
        pos = torch.arange(S)
        off = torch.arange(W) * dil
        idx = pos[:, None] - off[None, :]
        mask = idx >= 0
        idx_c = torch.where(mask, idx, 0).reshape(-1)
        kg = k[:, :, idx_c, :].reshape(B, H, S, W, Dh)
        vg = v[:, :, idx_c, :].reshape(B, H, S, W, Dh)
        logits = torch.einsum("bhsd,bhswd->bhsw", q, kg) * scale
        logits = torch.where(mask[None, None, :, :], logits, -1e9)
        attn = _softmax(logits, axis=-1)
        o = torch.einsum("bhsw,bhswd->bhsd", attn, vg)
        return (lambda x, *d: x.permute(*d))(o, 0, 2, 1, 3).reshape(B, S, D) @ wo

    def _B_ref(x, w1, w3, w2):
        gate = torch.einsum("bsd,df->bsf", x, w1)
        up = torch.einsum("bsd,df->bsf", x, w3)
        h = _silu(gate) * up
        out = torch.einsum("bsf,fd->bsd", h, w2)
        return out

    x = A_x
    h = x + _A_ref(_layernorm(x, axis=-1), A_wqkv, A_wo)
    h2 = h + _B_ref(_layernorm(h, axis=-1), B_w1, B_w3, B_w2)
    return h2
```

```python
import sys
NAME = "sequential_preLN__sliding_local_dilated__glu_gated_swiglu__prompt"
S, D, F = 2048, 640, 1536
WS_XN, WS_QKV, WS_O, WS_H, WS_HN, WS_HH = 0, 4<<20, 12<<20, 16<<20, 20<<20, 24<<20
SLOT = dict(x=0, wqkv=1, wo=2, bx=3, w1=4, w3=5, w2=6, out=7, dbg=8, ws=9)

class A:
    def __init__(s): s.L = []
    def __call__(s, t): s.L.append("    " + t)
    def label(s, t): s.L.append(t + ":")
    def text(s): return "\n".join(s.L)

def srd(a, r, slot, off, nbytes):
    a(f"s_load_dwordx2 s[{r}:{r+1}], s[0:1], {slot*8}")
    a("s_waitcnt lgkmcnt(0)")
    if off:
        a(f"s_add_u32 s{r}, s{r}, {off}")
        a(f"s_addc_u32 s{r+1}, s{r+1}, 0")
    a(f"s_mov_b32 s{r+2}, {nbytes}")
    a(f"s_mov_b32 s{r+3}, 0x20000")

def allreduce(a, op, v, t):
    for r in (8, 4, 2, 1):
        a("s_nop 1")
        a(f"{op}_dpp v{v}, v{v}, v{v} row_ror:{r} row_mask:0xf bank_mask:0xf")
    for sw in ("v_permlane16_swap_b32", "v_permlane32_swap_b32"):
        a(f"v_mov_b32 v{t}, v{v}")
        a("s_nop 1")
        a(f"{sw} v{t}, v{v}")
        a("s_nop 1")
        a(f"{op} v{v}, v{v}, v{t}")

def wrap(name, body, vgpr):
    acc = (vgpr + 3)//4*4
    return f""".globl {name}
.p2align 8
.type {name},@function
{name}:
{body}
    s_endpgm
.section .rodata,"a"
.p2align 6
.amdhsa_kernel {name}
  .amdhsa_next_free_vgpr {vgpr}
  .amdhsa_next_free_sgpr 96
  .amdhsa_accum_offset {acc}
  .amdhsa_group_segment_fixed_size 0
  .amdhsa_kernarg_size 80
  .amdhsa_user_sgpr_count 2
  .amdhsa_user_sgpr_kernarg_segment_ptr 1
  .amdhsa_system_sgpr_workgroup_id_x 1
.end_amdhsa_kernel
.text
"""

def k_ln(name, src, dst):
    a = A()
    a("s_cmp_ge_u32 s2, 512")
    a(f"s_cbranch_scc1 {name}_done")
    srd(a, 8, src[0], src[1], S*D*2)
    srd(a, 12, dst[0], dst[1], S*D*2)
    a("v_lshrrev_b32 v1, 6, v0")
    a("s_lshl_b32 s3, s2, 2")
    a("v_add_u32 v1, s3, v1")
    a("v_mul_u32_u24 v1, 1280, v1")
    a("v_and_b32 v2, 63, v0")
    a("v_lshl_add_u32 v1, v2, 2, v1")
    for i in range(5):
        a(f"buffer_load_dword v{10+i}, v1, s[8:11], 0 offen offset:{i*256}")
    a("s_waitcnt vmcnt(0)")
    for i in range(5):
        a(f"v_lshlrev_b32 v{20+2*i}, 16, v{10+i}")
        a(f"v_and_b32 v{21+2*i}, 0xffff0000, v{10+i}")
    a("v_add_f32 v4, v20, v21")
    for i in range(2, 10): a(f"v_add_f32 v4, v4, v{20+i}")
    allreduce(a, "v_add_f32", 4, 5)
    a(f"v_mul_f32 v4, {1.0/640!r}, v4")
    for i in range(10): a(f"v_sub_f32 v{20+i}, v{20+i}, v4")
    a("v_mul_f32 v4, v20, v20")
    for i in range(1, 10): a(f"v_fmac_f32 v4, v{20+i}, v{20+i}")
    allreduce(a, "v_add_f32", 4, 5)
    a(f"v_mov_b32 v6, {1e-5!r}")
    a(f"v_fmac_f32 v6, {1.0/640!r}, v4")
    a("v_rsq_f32 v6, v6")
    a("s_nop 0")
    for i in range(10): a(f"v_mul_f32 v{20+i}, v{20+i}, v6")
    for i in range(5):
        a(f"v_cvt_pk_bf16_f32 v{10+i}, v{20+2*i}, v{21+2*i}")
        a(f"buffer_store_dword v{10+i}, v1, s[12:15], 0 offen offset:{i*256}")
    a("s_waitcnt vmcnt(0)")
    a.label(f"{name}_done")
    return wrap(name, a.text(), 32), (512, 256, 0)

def k_attn(name):
    a = A()
    a("s_cmp_ge_u32 s2, 256")
    a(f"s_cbranch_scc1 {name}_done")
    srd(a, 8, SLOT['ws'], WS_QKV, S*3*D*2)
    srd(a, 12, SLOT['ws'], WS_O, S*D*2)
    a("s_lshl_b32 s3, s2, 3")
    a("v_lshrrev_b32 v1, 5, v0")
    a("v_add_u32 v1, s3, v1")
    a("v_and_b32 v2, 31, v0")
    a("v_mul_u32_u24 v2, 40, v2")
    a("v_mul_u32_u24 v3, 3840, v1")
    a("v_add_u32 v3, v3, v2")
    a("v_mul_u32_u24 v4, 1280, v1")
    a("v_add_u32 v4, v4, v2")
    Q, K, V, LG, O = 10, 20, 100, 180, 190
    for i in range(5): a(f"buffer_load_dwordx2 v[{Q+2*i}:{Q+2*i+1}], v3, s[8:11], 0 offen offset:{i*8}")
    for w in range(8):
        a(f"v_subrev_u32 v5, {2*w}, v1")
        a("v_max_i32 v5, 0, v5")
        a("v_mul_u32_u24 v5, 3840, v5")
        a("v_add_u32 v5, v5, v2")
        for i in range(5):
            a(f"buffer_load_dwordx2 v[{K+10*w+2*i}:{K+10*w+2*i+1}], v5, s[8:11], 0 offen offset:{1280+i*8}")
            a(f"buffer_load_dwordx2 v[{V+10*w+2*i}:{V+10*w+2*i+1}], v5, s[8:11], 0 offen offset:{2560+i*8}")
        a("s_waitcnt vmcnt(40)")
    a("s_waitcnt vmcnt(0)")
    import math
    sc = 20 ** -0.5 * math.log2(math.e)
    a("v_mov_b32 v7, 0xf149f2ca")
    for w in range(8):
        a(f"v_mov_b32 v{LG+w}, 0")
        for i in range(10):
            a(f"v_dot2c_f32_bf16 v{LG+w}, v{Q+i}, v{K+10*w+i}")
        a("s_nop 3")
        a(f"v_mul_f32 v{LG+w}, {sc!r}, v{LG+w}")
        a(f"v_cmp_le_u32 vcc, {2*w}, v1")
        a("s_nop 1")
        a(f"v_cndmask_b32 v{LG+w}, v7, v{LG+w}, vcc")
    a(f"v_max_f32 v6, v{LG}, v{LG+1}")
    for w in range(2, 8): a(f"v_max_f32 v6, v6, v{LG+w}")
    for w in range(8):
        a(f"v_sub_f32 v{LG+w}, v{LG+w}, v6")
        a(f"v_exp_f32 v{LG+w}, v{LG+w}")
    a("s_nop 0")
    a(f"v_add_f32 v6, v{LG}, v{LG+1}")
    for w in range(2, 8): a(f"v_add_f32 v6, v6, v{LG+w}")
    a("v_rcp_f32 v6, v6")
    a("s_nop 0")
    for w in range(8): a(f"v_mul_f32 v{LG+w}, v{LG+w}, v6")
    for i in range(20): a(f"v_mov_b32 v{O+i}, 0")
    for w in range(8):
        for i in range(10):
            a(f"v_lshlrev_b32 v8, 16, v{V+10*w+i}")
            a(f"v_and_b32 v9, 0xffff0000, v{V+10*w+i}")
            a(f"v_fmac_f32 v{O+2*i}, v{LG+w}, v8")
            a(f"v_fmac_f32 v{O+2*i+1}, v{LG+w}, v9")
    for i in range(10): a(f"v_cvt_pk_bf16_f32 v{Q+i}, v{O+2*i}, v{O+2*i+1}")
    for i in range(5): a(f"buffer_store_dwordx2 v[{Q+2*i}:{Q+2*i+1}], v4, s[12:15], 0 offen offset:{i*8}")
    a("s_waitcnt vmcnt(0)")
    a.label(f"{name}_done")
    return wrap(name, a.text(), 216), (256, 256, 0)

def k_gemm(name, Asrc, K, Bslots, N, dst, epi, resid=None):
    a = A()
    nb = N // 64
    nwg = (S // 64) * nb
    nB = len(Bslots)
    a(f"s_cmp_ge_u32 s2, {nwg}")
    a(f"s_cbranch_scc1 {name}_done")
    srd(a, 8, Asrc[0], Asrc[1], S*K*2)
    for i, b in enumerate(Bslots): srd(a, 12+4*i, b, 0, K*N*2)
    srd(a, 20, dst[0], dst[1], S*N*2)
    if resid: srd(a, 24, resid[0], resid[1], S*N*2)
    a("s_and_b32 s30, s2, 31")
    a("s_lshr_b32 s31, s2, 5")
    a("v_lshrrev_b32 v1, 6, v0")
    a("s_nop 0")
    a("v_readfirstlane_b32 s32, v1")
    a("v_and_b32 v2, 63, v0")
    a("v_lshrrev_b32 v3, 3, v2")
    a("v_and_b32 v4, 7, v2")
    for j in range(2):
        a(f"v_add_u32 v5, {8*j}, v3")
        a("v_lshrrev_b32 v6, 1, v5")
        a("v_xor_b32 v6, v6, v4")
        a("v_lshlrev_b32 v6, 4, v6")
        a(f"v_mul_u32_u24 v5, {K*2}, v5")
        a(f"v_add_u32 v{10+j}, v5, v6")
    for j in range(2):
        a("v_bfe_u32 v5, v3, 1, 1")
        a(f"v_or_b32 v5, {2*j}, v5")
        a("v_lshlrev_b32 v5, 1, v5")
        a("v_xor_b32 v6, v5, v4")
        a("v_lshlrev_b32 v6, 4, v6")
        a(f"v_add_u32 v5, {8*j}, v3")
        a(f"v_mul_u32_u24 v5, {N*2}, v5")
        a(f"v_add_u32 v{12+j}, v5, v6")
    a("s_lshl_b32 s33, s30, 6"); a("s_lshl_b32 s34, s32, 4"); a("s_add_u32 s33, s33, s34")
    a(f"s_mul_i32 s35, s33, {K*2}")
    a(f"s_mul_i32 s36, s34, {N*2}")
    a("s_lshl_b32 s37, s31, 7")
    a("s_add_u32 s36, s36, s37")
    a("s_lshl_b32 s38, s32, 11")
    a("v_and_b32 v5, 15, v2")
    a("v_lshrrev_b32 v6, 4, v2")
    for ks in range(2):
        a(f"v_add_u32 v7, {4*ks}, v6")
        a("v_lshrrev_b32 v8, 1, v5")
        a("v_xor_b32 v7, v7, v8")
        a("v_lshlrev_b32 v7, 4, v7")
        a("v_lshl_add_u32 v7, v5, 7, v7")
        a(f"v_add_u32 v{14+ks}, s38, v7")
    a("v_bfe_u32 v7, v2, 2, 2")
    a("v_lshl_add_u32 v8, v6, 3, v7")
    a("v_lshlrev_b32 v8, 7, v8")
    a("v_and_b32 v9, 3, v2")
    a("v_lshl_add_u32 v8, v9, 3, v8")
    a("v_lshrrev_b32 v7, 1, v7")
    a("v_and_b32 v9, 1, v6")
    a("v_lshl_or_b32 v7, v9, 1, v7")
    for t in range(4):
        a(f"v_xor_b32 v9, {t}, v7")
        a(f"v_lshl_add_u32 v{16+t}, v9, 5, v8")
    ACC = 32
    for i in range(16*nB): a(f"v_mov_b32 v{ACC+i}, 0")
    AF, BF = 64, 72
    a("s_mov_b32 s39, 0")
    a.label(f"{name}_loop")
    for j in range(2):
        a(f"s_add_u32 m0, s38, {j*1024}")
        a("s_nop 0")
        a(f"buffer_load_dwordx4 v{10+j}, s[8:11], s35 offen lds")
        for b in range(nB):
            a(f"s_add_u32 m0, s38, {8192*(b+1) + j*1024}")
            a("s_nop 0")
            a(f"buffer_load_dwordx4 v{12+j}, s[{12+4*b}:{15+4*b}], s36 offen lds")
    a("s_add_u32 s35, s35, 128")
    a(f"s_add_u32 s36, s36, {64*N*2}")
    a("s_waitcnt vmcnt(0)")
    a("s_barrier")
    for ks in range(2):
        a(f"ds_read_b128 v[{AF+4*ks}:{AF+4*ks+3}], v{14+ks}")
    for b in range(nB):
        for ks in range(2):
            for t in range(4):
                for h in range(2):
                    r = BF + ((b*2+ks)*4 + t)*4 + 2*h
                    a(f"ds_read_b64_tr_b16 v[{r}:{r+1}], v{16+t} offset:{8192*(b+1) + (32*ks+4*h)*128}")
            a("s_waitcnt lgkmcnt(0)")
    for b in range(nB):
        for ks in range(2):
            for t in range(4):
                r = BF + ((b*2+ks)*4 + t)*4
                c = ACC + b*16 + t*4
                a(f"v_mfma_f32_16x16x32_bf16 v[{c}:{c+3}], v[{r}:{r+3}], v[{AF+4*ks}:{AF+4*ks+3}], v[{c}:{c+3}]")
    a("s_barrier")
    a("s_add_u32 s39, s39, 1")
    a(f"s_cmp_lt_u32 s39, {K//64}")
    a(f"s_cbranch_scc1 {name}_loop")
    a("s_nop 15")
    a("v_add_u32 v7, s33, v5")
    a(f"v_mul_u32_u24 v7, {N*2}, v7")
    a("v_lshl_add_u32 v7, v6, 3, v7")
    a("v_add_u32 v7, s37, v7")
    if epi == "resid":
        for t in range(4): a(f"buffer_load_dwordx2 v[{AF+2*t}:{AF+2*t+1}], v7, s[24:27], 0 offen offset:{32*t}")
        a("s_waitcnt vmcnt(0)")
        for t in range(4):
            for h in range(2):
                a(f"v_lshlrev_b32 v8, 16, v{AF+2*t+h}")
                a(f"v_and_b32 v9, 0xffff0000, v{AF+2*t+h}")
                a(f"v_add_f32 v{ACC+4*t+2*h}, v{ACC+4*t+2*h}, v8")
                a(f"v_add_f32 v{ACC+4*t+2*h+1}, v{ACC+4*t+2*h+1}, v9")
    if epi == "swiglu":
        import math
        for i in range(16):
            a(f"v_mul_f32 v8, {-math.log2(math.e)!r}, v{ACC+i}")
            a("v_exp_f32 v8, v8")
            a("s_nop 0")
            a("v_add_f32 v8, 1.0, v8")
            a("v_rcp_f32 v8, v8")
            a(f"v_mul_f32 v{ACC+i}, v{ACC+i}, v{ACC+16+i}")
            a(f"v_mul_f32 v{ACC+i}, v{ACC+i}, v8")
    for t in range(4):
        a(f"v_cvt_pk_bf16_f32 v{AF+2*t}, v{ACC+4*t}, v{ACC+4*t+1}")
        a(f"v_cvt_pk_bf16_f32 v{AF+2*t+1}, v{ACC+4*t+2}, v{ACC+4*t+3}")
        a(f"buffer_store_dwordx2 v[{AF+2*t}:{AF+2*t+1}], v7, s[20:23], 0 offen offset:{32*t}")
    a("s_waitcnt vmcnt(0)")
    a.label(f"{name}_done")
    return wrap(name, a.text(), BF + 32*nB), (nwg, 256, 8192*(1+nB))

def header():
    return open("cdna_kernels/" + NAME + ".s.ref").read().split("; Override launch")[0]

def build(extra_front=(), extra_back=()):
    ws = SLOT['ws']
    ks = [
        ("ln1_kernel", k_ln("ln1_kernel", (SLOT['x'], 0), (ws, WS_XN))),
        ("qkv_kernel", k_gemm("qkv_kernel", (ws, WS_XN), D, [SLOT['wqkv']], 3*D, (ws, WS_QKV), "store")),
        ("attn_kernel", k_attn("attn_kernel")),
        ("wo_kernel", k_gemm("wo_kernel", (ws, WS_O), D, [SLOT['wo']], D, (ws, WS_H), "resid", (SLOT['x'], 0))),
        ("ln2_kernel", k_ln("ln2_kernel", (ws, WS_H), (ws, WS_HN))),
        ("up_kernel", k_gemm("up_kernel", (ws, WS_HN), D, [SLOT['w1'], SLOT['w3']], F, (ws, WS_HH), "swiglu")),
        ("down_kernel", k_gemm("down_kernel", (ws, WS_HH), F, [SLOT['w2']], D, (SLOT['out'], 0), "resid", (ws, WS_H))),
    ]
    ks = list(extra_front) + ks + list(extra_back)
    out = header()
    for n, (txt, (g, b, l)) in ks:
        out += f"; @launch kernel={n} grid=({g},1,1) block=({b},1,1) lds={l}\n"
    out += '.amdgcn_target "amdgcn-amd-amdhsa--gfx950"\n.text\n'
    seen = set()
    for n, (txt, _) in ks:
        if n not in seen:
            out += txt
            seen.add(n)
    return out

if __name__ == "__main__":
    open(sys.argv[1] if len(sys.argv) > 1 else "cdna_kernels/" + NAME + ".s", "w").write(build())
```

```python
import sys
sys.path.insert(0, "work")
from gen_v0 import *

def k_empty(name, nwg=256):
    a = A()
    a("s_nop 0")
    return wrap(name, a.text(), 8), (nwg, 256, 0)

def k_lat(name, slot, n, stride, nbytes, off=0):
    a = A()
    a("s_cmp_ge_u32 s2, 64")
    a(f"s_cbranch_scc1 {name}_done")
    srd(a, 8, slot, off, nbytes)
    a("s_lshl_b32 s3, s2, 10")
    a("v_and_b32 v1, 63, v0")
    a("v_lshlrev_b32 v1, 2, v1")
    a("v_add_u32 v1, s3, v1")
    for j in range(n):
        a("buffer_load_dword v2, v1, s[8:11], 0 offen")
        a("s_waitcnt vmcnt(0)")
        a(f"v_add_u32 v1, {stride}, v1")
    a.label(f"{name}_done")
    return wrap(name, a.text(), 8), (64, 64, 0)

def k_stream(name, slot, nbytes):
    a = A()
    a("s_cmp_ge_u32 s2, 256")
    a(f"s_cbranch_scc1 {name}_done")
    srd(a, 8, slot, 0, nbytes)
    a("v_lshrrev_b32 v1, 6, v0")
    a("s_nop 0")
    a("v_readfirstlane_b32 s18, v1")
    a("v_and_b32 v2, 63, v0")
    a("s_lshr_b32 s20, s2, 4")
    a("s_min_u32 s20, s20, 14")
    a("s_lshl_b32 s25, s20, 8")
    a("v_lshrrev_b32 v7, 4, v2"); a("v_mul_u32_u24 v7, 3840, v7"); a("v_and_b32 v4, 15, v2"); a("v_lshlrev_b32 v4, 4, v4"); a("v_add_u32 v7, v7, v4")
    a(f"s_mul_i32 s26, s18, {4*3840}"); a("s_add_u32 s25, s25, s26")
    a(f"s_mul_i32 s27, s18, {16*1024}")
    for i in range(40):
        a(f"s_add_u32 s21, s25, {i*16*3840}")
        a(f"s_add_u32 m0, s27, {(i % 16)*1024}")
        a("s_nop 0")
        a("buffer_load_dwordx4 v7, s[8:11], s21 offen lds")
        a("s_waitcnt vmcnt(15)")
    a("s_waitcnt vmcnt(0)")
    a.label(f"{name}_done")
    return wrap(name, a.text(), 16), (256, 256, 100*1024)

d = "var/"
import os
os.makedirs(d, exist_ok=True)
e = ("empty_kernel", k_empty("empty_kernel"))
open(d+"p_base.s", "w").write(build())
open(d+"p_empty8.s", "w").write(build(extra_front=[e]*8))
open(d+"p_lat_bx.s", "w").write(build(extra_front=[("lat_kernel", k_lat("lat_kernel", SLOT['bx'], 32, 65536, S*D*2))]))
open(d+"p_lat_ws.s", "w").write(build(extra_front=[("lat_kernel", k_lat("lat_kernel", SLOT['ws'], 32, 65536, S*D*2, off=64<<20))]))
open(d+"p_stream.s", "w").write(build(extra_front=[("stream_kernel", k_stream("stream_kernel", SLOT['bx'], S*D*2))]))
open(d+"p_empty1.s", "w").write(build(extra_front=[e]))
```

```python
import sys
sys.path.insert(0, "work")
from gen_v0 import *
from gen_probe import k_empty

def k_bulk(name, kb, flags, off, store=None):
    a = A()
    a("s_cmp_ge_u32 s2, 256")
    a(f"s_cbranch_scc1 {name}_done")
    srd(a, 8, SLOT['ws'], off, 64<<20)
    a("v_lshlrev_b32 v7, 4, v0")
    a(f"s_mul_i32 s25, s2, {kb*1024}")
    n = kb // 4
    for i in range(n):
        a(f"s_add_u32 s21, s25, {i*4096}")
        r = 8 + (i % 16)*4
        if store is None:
            a(f"buffer_load_dwordx4 v[{r}:{r+3}], v7, s[8:11], s21 offen {flags}")
        else:
            a(f"buffer_store_dwordx4 v[{r}:{r+3}], v7, s[8:11], s21 offen {flags}")
        a("s_waitcnt vmcnt(15)")
    a("s_waitcnt vmcnt(0)")
    a.label(f"{name}_done")
    return wrap(name, a.text(), 80), (256, 256, 100*1024)

d = "var/"
e = ("empty_kernel", k_empty("empty_kernel"))
open(d+"q_empty1.s", "w").write(build(extra_front=[e]))
open(d+"q_ld128.s", "w").write(build(extra_front=[("bulk_kernel", k_bulk("bulk_kernel", 128, "", 64<<20))]))
open(d+"q_ld128nt.s", "w").write(build(extra_front=[("bulk_kernel", k_bulk("bulk_kernel", 128, "nt", 64<<20))]))
open(d+"q_ld128hi.s", "w").write(build(extra_front=[("bulk_kernel", k_bulk("bulk_kernel", 128, "", 192<<20))]))
open(d+"q_st64.s", "w").write(build(extra_front=[("bulk_kernel", k_bulk("bulk_kernel", 64, "sc1", 64<<20, store=1))]))
open(d+"q_ld32.s", "w").write(build(extra_front=[("bulk_kernel", k_bulk("bulk_kernel", 32, "", 64<<20))]))
```

```python
import re

_REG = re.compile(r"(?<![\w.])([vas])\[(\d+):(\d+)\]|(?<![\w.])([vas])(\d+)(?![\w])|(?<![\w.])(vcc|exec|m0|scc)(?![\w])")

def regs_in(s):
    out = []
    for m in _REG.finditer(s):
        if m.group(1):
            out += [f"{m.group(1)}{i}" for i in range(int(m.group(2)), int(m.group(3)) + 1)]
        elif m.group(4):
            out.append(f"{m.group(4)}{m.group(5)}")
        else:
            out.append(m.group(6))
    return out

TRANS = ("v_exp_f32", "v_log_f32", "v_rcp_f32", "v_rsq_f32", "v_sqrt_f32", "v_sin_f32", "v_cos_f32")
S_NODST = ("s_cmp", "s_waitcnt", "s_barrier", "s_branch", "s_cbranch", "s_nop", "s_sleep", "s_setprio", "s_endpgm", "s_bitcmp", "s_setreg")
S_SCC_W = ("s_cmp", "s_add", "s_sub", "s_lshl", "s_lshr", "s_ashr", "s_and", "s_or", "s_xor", "s_min", "s_max", "s_bitcmp", "s_not", "s_bfe", "s_andn2", "s_orn2", "s_abs")

class Ins:
    __slots__ = ("text", "op", "defs", "uses", "kind", "tag", "arg", "srcc", "srcab")
    def __init__(self, text, tag=None, kind=None, arg=None):
        self.text = text
        self.tag = tag
        self.arg = arg
        self.defs, self.uses = set(), set()
        self.srcc, self.srcab = (), ()
        if kind is not None:
            self.kind = kind
            self.op = kind
            return
        t = text.split(";")[0].strip()
        parts = t.split(None, 1)
        op = parts[0]
        self.op = op
        rest = parts[1] if len(parts) > 1 else ""
        ops, depth, cur = [], 0, ""
        for ch in rest:
            if ch in "[(": depth += 1
            if ch in "])": depth -= 1
            if ch == "," and depth == 0:
                ops.append(cur.strip()); cur = ""
            else:
                cur += ch
        if cur.strip(): ops.append(cur.strip())
        R = [regs_in(o) for o in ops]
        allr = lambda lst: set(x for r in lst for x in r)
        if op.startswith("v_mfma"):
            self.kind = "mfma"
            self.defs = set(R[0]); self.uses = allr(R[1:])
            self.srcab = tuple(R[1] + R[2]); self.srcc = tuple(R[3])
            self.arg = 8 if "32x32" in op else 4
        elif op.startswith("buffer_load") or op.startswith("global_load"):
            if re.search(r"\blds\b", t) or "_lds_" in op:
                self.kind = "dma"; self.uses = allr(R) | {"m0"}
            else:
                self.kind = "vload"; self.defs = set(R[0]); self.uses = allr(R[1:])
        elif op.startswith("buffer_store") or op.startswith("global_store"):
            self.kind = "vstore"; self.uses = allr(R)
            if op.endswith("x3") or op.endswith("x4"):
                self.arg = set(R[0] if op.startswith("buffer") else R[1])
        elif op.startswith("buffer_atomic"):
            self.kind = "vstore"; self.uses = allr(R)
        elif op in ("buffer_wbl2", "buffer_inv"):
            self.kind = "vstore"
        elif op.startswith("ds_read") or op.startswith("ds_bpermute") or op.startswith("ds_swizzle"):
            self.kind = "dsread"; self.defs = set(R[0]); self.uses = allr(R[1:])
        elif op.startswith("ds_write"):
            self.kind = "dswrite"; self.uses = allr(R)
        elif op.startswith("s_load") or op in ("s_memtime", "s_memrealtime"):
            self.kind = "smem"; self.defs = set(R[0]); self.uses = allr(R[1:])
        elif op == "s_waitcnt":
            self.kind = "wait"
        elif op == "s_barrier":
            self.kind = "barrier"
        elif op == "s_nop":
            self.kind = "nop"; self.arg = int(rest, 0) + 1
        elif op.startswith("s_branch") or op.startswith("s_cbranch") or op == "s_endpgm":
            self.kind = "branch"
            if "scc" in op: self.uses = {"scc"}
            if "vcc" in op: self.uses = {"vcc"}
            if "exec" in op: self.uses = {"exec"}
        elif op.startswith("s_"):
            self.kind = "salu"
            if op.startswith(S_NODST):
                self.uses = allr(R)
            else:
                self.defs = set(R[0]); self.uses = allr(R[1:])
            if op.startswith(S_SCC_W): self.defs = self.defs | {"scc"}
            if op.startswith(("s_cselect", "s_addc", "s_subb", "s_cmov")): self.uses = self.uses | {"scc"}
            if op.startswith(("s_addk", "s_mulk", "s_cmov", "s_bitset")): self.uses = self.uses | set(R[0])
            if "saveexec" in op: self.defs = self.defs | {"exec"}; self.uses = self.uses | {"exec"}
        elif op.startswith("v_"):
            self.kind = "valu"
            base = re.sub(r"_(e32|e64|dpp|sdwa)$", "", op)
            if "permlane" in op and "swap" in op:
                self.defs = allr(R[:2]); self.uses = allr(R[:2]); self.arg = "perm"
            elif "_co_" in op:
                self.defs = allr(R[:2]); self.uses = allr(R[2:])
            else:
                self.defs = set(R[0]); self.uses = allr(R[1:])
            if base.startswith(("v_fmac", "v_dot2c", "v_mac", "v_writelane")): self.uses = self.uses | set(R[0])
            if op.endswith("_dpp"):
                self.arg = "dpp"; self.uses = self.uses | set(R[0])
            if base in TRANS: self.arg = "trans"
            if base.startswith("v_dot2"): self.arg = "dot"
            if base.startswith(("v_readfirstlane", "v_readlane")): self.arg = "rdlane"
        else:
            raise ValueError("unknown instruction: " + text)

class Prog:
    def __init__(self):
        self.L = []
    def __call__(self, text, tag=None):
        i = Ins(text, tag)
        self.L.append(i)
        return i
    def label(self, name):
        self.L.append(Ins(name + ":", kind="label"))
    def raw(self, text):
        self.L.append(Ins(text, kind="raw"))
    def comment(self, text):
        self.L.append(Ins("; " + text, kind="raw"))
    def wait_vm(self, *tags):
        self.L.append(Ins("", kind="waitvm", arg=set(tags)))
    def wait_lg(self, *tags):
        self.L.append(Ins("", kind="waitlg", arg=set(tags)))
    def known_drained(self, vm=True, lg=True):
        self.L.append(Ins("", kind="drained", arg=(vm, lg)))
    def extend(self, other):
        self.L += other.L if isinstance(other, Prog) else list(other)
    def __len__(self): return len(self.L)

def weave(main, streams):
    main = main.L if isinstance(main, Prog) else list(main)
    slots = [[] for _ in range(len(main) + 1)]
    for si, (items, lo, hi) in enumerate(streams):
        items = items.L if isinstance(items, Prog) else list(items)
        n = len(items)
        for k, it in enumerate(items):
            pos = lo + (hi - lo) * k / max(n, 1)
            p = min(max(int(pos) + 1, 0), len(main))
            slots[p].append((pos, si, k, it))
    out = []
    for k in range(len(main) + 1):
        for _, _, _, it in sorted(slots[k], key=lambda x: (x[0], x[1], x[2])):
            out += it if isinstance(it, list) else [it]
        if k < len(main): out.append(main[k])
    return out

def insert_waits(L):
    out = []
    vm, lg = [], []
    def emit(nvm, nlg):
        nonlocal vm, lg
        parts = []
        if nvm is not None:
            nvm = min(nvm, 63); parts.append(f"vmcnt({nvm})"); vm = vm[len(vm) - nvm:] if nvm else []
        if nlg is not None:
            nlg = min(nlg, 15); parts.append(f"lgkmcnt({nlg})"); lg = lg[len(lg) - nlg:] if nlg else []
        if parts: out.append(Ins("s_waitcnt " + " ".join(parts)))
    def need(q, pred):
        idx = [k for k, e in enumerate(q) if pred(e)]
        return None if not idx else len(q) - 1 - max(idx)
    for i in L:
        if i.kind == "waitvm":
            emit(need(vm, lambda e: (not i.arg) or e[1] in i.arg), None); continue
        if i.kind == "waitlg":
            n = need(lg, lambda e: (not i.arg) or e[1] in i.arg)
            if n is not None and any(e[2] for e in lg): n = 0
            emit(None, n); continue
        if i.kind == "drained":
            if i.arg[0]: vm = []
            if i.arg[1]: lg = []
            continue
        if i.kind == "wait":
            m = re.search(r"vmcnt\((\d+)\)", i.text)
            if m:
                n = int(m.group(1)); vm = vm[max(len(vm) - n, 0):] if n else []
            m = re.search(r"lgkmcnt\((\d+)\)", i.text)
            if m:
                n = int(m.group(1))
                if n == 0: lg = []
                elif not any(e[2] for e in lg): lg = lg[max(len(lg) - n, 0):]
            out.append(i); continue
        touched = i.defs | i.uses
        nvm = need(vm, lambda e: e[0] & touched)
        nlg = need(lg, lambda e: e[0] & touched)
        if nlg is not None and any(e[2] for e in lg): nlg = 0
        emit(nvm, nlg)
        out.append(i)
        if i.kind in ("vload", "vstore", "dma"):
            vm.append((i.defs, i.tag, False))
            if len(vm) > 63: vm = vm[-63:] if False else vm
        elif i.kind in ("dsread", "dswrite"):
            lg.append((i.defs, i.tag, False))
        elif i.kind == "smem":
            lg.append((i.defs, i.tag, True))
    return out

def insert_nops(L):
    out = []
    hist = []
    def dist_to(pred, limit):
        d = 0
        for ins, st in reversed(hist):
            if d >= limit: return None
            if pred(ins): return d
            d += st
        return None
    isv = lambda r: r[0] in "va" and r not in ("vcc",)
    for i in L:
        if i.kind in ("label", "raw"):
            out.append(i); continue
        need = 0
        def req(pred, n):
            nonlocal need
            d = dist_to(pred, n)
            if d is not None: need = max(need, n - d)
        vu = {r for r in i.uses if isv(r)}
        vd = {r for r in i.defs if isv(r)}
        su = {r for r in i.uses if not isv(r)}
        valu = lambda p: p.kind == "valu"
        if i.kind == "mfma":
            req(lambda p: valu(p) and p.defs & vu, 2)
            for passes, nab, nc in ((4, 8, 6), (8, 12, 10)):
                req(lambda p: p.kind == "mfma" and p.arg == passes and p.defs & set(i.srcab), nab)
                req(lambda p: p.kind == "mfma" and p.arg == passes and p.defs & set(i.srcc) and not (p.defs == set(i.srcc) and p.arg == i.arg), nc)
                req(lambda p: p.kind == "mfma" and p.arg == passes and p.defs & vd and not (p.defs & set(i.srcc)), nc)
        if i.kind in ("valu", "vload", "vstore", "dma", "dsread", "dswrite"):
            for passes, n in ((4, 8), (8, 12)):
                req(lambda p: p.kind == "mfma" and p.arg == passes and p.defs & (vu | vd), n)
        if i.kind == "valu":
            for passes, n in ((4, 3), (8, 7)):
                req(lambda p: p.kind == "mfma" and p.arg == passes and set(p.srcc) & vd, n)
            if i.arg in ("dpp", "perm"): req(lambda p: valu(p) and p.defs & vu, 2)
            if i.arg == "rdlane": req(lambda p: valu(p) and p.defs & vu, 1)
            if i.arg != "trans": req(lambda p: valu(p) and p.arg == "trans" and p.defs & vu, 1)
            req(lambda p: valu(p) and p.defs & su, 2)
            req(lambda p: p.kind == "vstore" and isinstance(p.arg, set) and p.arg & vd, 2)
            req(lambda p: valu(p) and p.arg == "dot" and p.defs & (vu | vd) and not (i.arg == "dot" and p.op == i.op and p.defs == i.defs), 3)
        if i.kind in ("vload", "dsread"):
            req(lambda p: p.kind == "vstore" and isinstance(p.arg, set) and p.arg & vd, 1)
        if i.kind in ("vload", "vstore", "dma"):
            req(lambda p: valu(p) and p.defs & su, 5)
        if i.kind in ("vstore", "dswrite", "vload", "dsread", "dma", "mfma"):
            req(lambda p: valu(p) and p.arg in ("dot",) and p.defs & vu, 3)
            req(lambda p: valu(p) and p.arg == "trans" and p.defs & vu, 1)
        if i.kind == "dma":
            req(lambda p: p.kind == "salu" and "m0" in p.defs, 1)
        if i.kind in ("salu", "branch", "smem"):
            req(lambda p: valu(p) and p.defs & su, 1)
        while need > 0:
            k = min(need, 16)
            n = Ins(f"s_nop {k-1}")
            out.append(n); hist.append((n, k)); need -= k
        out.append(i)
        hist.append((i, i.arg if i.kind == "nop" else 1))
        if len(hist) > 40: hist = hist[-30:]
    return out

def render(L):
    return "\n".join((i.text if i.kind in ("label", "raw") else "    " + i.text) for i in L if i.text)

def finalize(prog):
    L = prog.L if isinstance(prog, Prog) else prog
    return insert_nops(insert_waits(L))
```

```python
from gen1 import *
import gen1

MF = "v_mfma_f32_16x16x32_bf16"
WSR = f"s[{sWS}:{sWS+3}]"
def vr(r, n=4): return f"v[{r}:{r+n-1}]"
def ar(r, n=4): return f"a[{r}:{r+n-1}]"
_lab = [0]

def poll(a, cfg, wave, vaddr, soff, width, cmp_lines, vtmp):
    n = _lab[0]; _lab[0] += 1
    a(f"s_cmp_eq_u32 s{sW}, {wave}")
    a(f"s_cbranch_scc0 L_pollx{n}")
    a.raw(f"    s_mov_b32 s60, 0")
    a.label(f"L_poll{n}")
    ld = {1: "buffer_load_dword v%d" % vtmp, 2: "buffer_load_dwordx2 " + vr(vtmp, 2), 4: "buffer_load_dwordx4 " + vr(vtmp, 4)}[width]
    a.raw(f"    {ld}, v{vaddr}, {WSR}, {soff} offen sc1")
    a.raw("    s_add_u32 s60, s60, 1")
    a.raw(f"    s_cmp_gt_u32 s60, {cfg.spin}")
    a.raw(f"    s_cbranch_scc1 L_pollx{n}")
    a.raw("    s_waitcnt vmcnt(0)")
    for t in cmp_lines: a.raw("    " + t)
    a.raw("    s_nop 1")
    a.raw(f"    s_cbranch_vccnz L_poll{n}")
    return f"L_pollx{n}"

def signal(a, cfg, base, value_s, vtmp, wave=0):
    n = _lab[0]; _lab[0] += 1
    a(f"s_lshl_b32 s60, s{sU}, 7")
    a(f"s_add_u32 s60, s60, {base}")
    a(f"s_cmp_eq_u32 s{sW}, {wave}")
    a(f"s_cselect_b32 s60, s60, {OOB}")
    a(f"v_mov_b32 v{vtmp}, s{value_s}")
    a("s_mov_b64 exec, 1")
    if cfg.nx == 1 and not cfg.force_slow:
        a(f"s_cmp_eq_u32 s{sFAST}, 1")
        a(f"s_cselect_b32 s61, s60, {OOB}")
        a(f"s_cselect_b32 s60, {OOB}, s60")
        a(f"buffer_store_dword v{vtmp}, off, {WSR}, s61")
    a(f"buffer_store_dword v{vtmp}, off, {WSR}, s60 sc1")
    a("s_mov_b64 exec, -1")

ACC = 64
def acc(T, kt):
    return ACC + (kt-1)*4 if T == 0 else ACC + 16 + (T-1)*20 + kt*4
FRA = 168
P1_HALO = 131072

def phase1(a, cfg):
    vDA2, vDH, vDB, vRA, vRH, vRB = 4, 5, 6, 10, 12, 14
    sXs, sWs_, sHs, sMA = 40, 41, 42, 43
    p_ = "s44"; hh_ = "s45"
    a(f"s_and_b32 {p_}, s{sW}, 1")
    a(f"s_lshr_b32 {hh_}, s{sW}, 1")
    a(f"s_mul_i32 s30, s{sJ}, 40")
    a("s_lshr_b32 s31, s30, 6")
    a("s_add_u32 s30, s30, 39")
    a("s_lshr_b32 s30, s30, 6")
    a("s_mul_i32 s31, s31, 20")
    a("s_mul_i32 s30, s30, 20")
    a("s_add_u32 s30, s30, 19")
    a(f"v_add_u32 v22, s31, v{vL}")
    a("v_min_u32 v22, s30, v22")
    a(f"s_lshl_b32 s32, s{sG}, 4")
    a(f"v_subrev_u32 v23, 40, v{vL}")
    a("v_and_b32 v23, 15, v23")
    a("v_add_u32 v23, s32, v23")
    a(f"v_cmp_le_u32 vcc, 40, v{vL}")
    a("v_cndmask_b32 v22, v22, v23, vcc")
    a("s_max_u32 s33, s32, 16")
    a("s_sub_u32 s33, s33, 9")
    a(f"v_and_b32 v23, 1, v{vL}")
    a("v_lshl_add_u32 v23, v23, 3, s33")
    a(f"v_cmp_le_u32 vcc, 56, v{vL}")
    a("v_cndmask_b32 v22, v22, v23, vcc")
    a("v_lshlrev_b32 v22, 7, v22")
    a(f"v_add_u32 v{vDA2}, {20480 - 2048}, v{vL16}")
    a(f"s_lshl_b32 s30, s{sG}, 3")
    a(f"s_lshl_b32 s31, s{sW}, 1")
    a("s_add_u32 s31, s31, s30")
    a(f"s_mul_i32 s{sXs}, s31, 20480")
    a(f"s_add_u32 s{sXs}, s{sXs}, {WS_XN}")
    a(f"s_mul_i32 s{sWs_}, s{sJ}, 640")
    a(f"s_add_u32 s{sWs_}, s{sWs_}, {WS_WQ}")
    a(f"s_lshl_b32 s{sMA}, s{sW}, 12")
    a(f"s_mul_i32 s{sHs}, s30, 20480")
    a(f"s_lshl_b32 s31, s{sW}, 10")
    a(f"s_add_u32 s{sHs}, s{sHs}, s31")
    a(f"s_add_u32 s{sHs}, s{sHs}, {WS_XN - 5*20480}")
    a(f"s_cmp_eq_u32 s{sG}, 0")
    a(f"s_cselect_b32 s{sHs}, {OOB}, s{sHs}")
    a(f"v_or_b32 v{vDH}, 128, v{vL16}")
    a(f"v_bfe_u32 v23, v{vL}, 3, 1")
    a(f"s_mov_b32 s31, {4*20480}")
    a(f"v_mad_u32_u24 v{vDH}, v23, s31, v{vDH}")
    a(f"s_lshl_b32 s31, s{sW}, 8")
    a("s_movk_i32 s34, 1639")
    a("s_movk_i32 s35, 10240")
    for k in range(4):
        a(f"v_add_u32 v23, s31, v{vL}")
        if k: a(f"v_add_u32 v23, {64*k}, v23")
        a("v_mul_u32_u24 v24, s34, v23")
        a("v_lshrrev_b32 v24, 16, v24")
        a("v_mul_u32_u24 v25, 40, v24")
        a("v_sub_u32 v25, v23, v25")
        a("v_lshlrev_b32 v25, 4, v25")
        a(f"v_mad_u32_u24 v{vDB+k}, v24, s35, v25")
        if k: a(f"v_subrev_u32 v{vDB+k}, {1024*k}, v{vDB+k}")
    assert all((q*1639) >> 16 == q//40 for q in range(1024))
    a(f"s_cmp_eq_u32 s{sW}, 3")
    a(f"s_cselect_b32 s31, {OOB}, 0")
    a(f"v_or_b32 v{vDB+3}, s31, v{vDB+3}")
    a(f"v_and_b32 v23, 1, v{vGq}")
    a(f"v_lshrrev_b32 v24, 1, v{vGq}")
    a("v_lshl_or_b32 v23, v23, 1, v24")
    a(f"v_lshlrev_b32 v24, 4, v{vC}")
    a("v_lshl_add_u32 v24, v23, 8, v24")
    a(f"s_lshl_b32 s31, {p_}, 13")
    a(f"v_add_u32 v{vRA}, s31, v24")
    a(f"v_add_u32 v{vRA+1}, 0x10000, v{vRA}")
    a(f"s_xor_b32 s31, {p_}, 1")
    a("s_lshl_b32 s31, s31, 7")
    a(f"v_xor_b32 v{vRH}, s31, v24")
    a(f"v_add_u32 v{vRH}, {P1_HALO}, v{vRH}")
    a("v_mul_u32_u24 v23, 1920, v23")
    a(f"s_mul_i32 s31, {hh_}, 320")
    a("v_add_u32 v23, s31, v23")
    a(f"v_lshl_add_u32 v23, v{vC}, 4, v23")
    a(f"v_add_u32 v{vRB}, 16384, v23")
    a(f"v_add_u32 v{vRB+1}, {16384 + 640}, v23")
    a(f"v_cmp_gt_u32 vcc, 4, v{vC}")
    a(f"v_mov_b32 v24, {16384 + 76*16}")
    a(f"v_mov_b32 v25, {16384 + 16*16}")
    a("v_cndmask_b32 v24, v24, v25, vcc")
    a(f"v_add_u32 v{vRB+2}, v24, v23")
    a(f"v_mov_b32 v24, {16384 + 88*16}")
    a(f"v_mov_b32 v25, {16384 + 56*16}")
    a("v_cndmask_b32 v24, v24, v25, vcc")
    a(f"v_cmp_le_u32 vcc, 12, v{vC}")
    a(f"v_mov_b32 v25, {16384 + 84*16}")
    a("v_cndmask_b32 v24, v24, v25, vcc")
    a(f"v_add_u32 v{vRB+3}, v24, v23")
    for t in range(4): a(f"v_add_u32 v{vRB+4+t}, 0x10000, v{vRB+t}")
    a(f"s_mov_b32 s62, {WS_FA}")
    lab = poll(a, cfg, 3, 22, "s62", 2, [f"v_cmp_ne_u32 vcc, s{sEP}, v24"], 24)
    if cfg.nx == 1 and not cfg.force_slow:
        a.raw(f"    v_cmp_ne_u32 vcc, s{sFAST}, v25")
        a.raw("    s_nop 1")
        a.raw("    s_and_b32 s60, vcc_hi, 0x00ffff00")
        a.raw("    s_cmp_eq_u32 s60, 0")
        a.raw("    s_cselect_b32 s60, 1, 0")
        a.raw("    v_mov_b32 v24, s60")
        a.raw(f"    v_mov_b32 v25, {LDS_BYTES - 16}")
        a.raw("    ds_write_b32 v25, v24")
        a.raw("    s_waitcnt lgkmcnt(0)")
    a.label(lab)
    a("s_barrier")
    stamp(a, cfg, "p1_go")
    if cfg.nx == 1 and not cfg.force_slow:
        a(f"v_mov_b32 v25, {LDS_BYTES - 16}")
        a("ds_read_b32 v24, v25")
        a(f"v_readfirstlane_b32 s{sFAST}, v24")

    def dma_items(s):
        st = (s % 4) * 32768
        it = []
        P = Prog()
        P(f"s_add_u32 m0, s{sMA}, {st}")
        P(f"buffer_load_dwordx4 v{vL16}, {WSR}, s{sXs} offen sc1 lds", tag=f"d{s}")
        it.append(P.L); P = Prog()
        P(f"buffer_load_dwordx4 v{vL16}, {WSR}, s{sXs} offen offset:1024 sc1 lds", tag=f"d{s}"); it.append(P.L); P = Prog()
        P(f"buffer_load_dwordx4 v{vDA2}, {WSR}, s{sXs} offen offset:2048 sc1 lds", tag=f"d{s}"); it.append(P.L); P = Prog()
        P(f"buffer_load_dwordx4 v{vDA2}, {WSR}, s{sXs} offen offset:3072 sc1 lds", tag=f"d{s}")
        P(f"s_add_u32 s{sXs}, s{sXs}, 2048")
        P(f"s_add_u32 m0, s{sMA}, {st + 16384}")
        it.append(P.L)
        for k in range(4):
            P = Prog()
            P(f"buffer_load_dwordx4 v{vDB+k}, {WSR}, s{sWs_} offen offset:{1024*k} sc1 lds", tag=f"d{s}")
            if k == 3:
                P(f"s_add_u32 s{sWs_}, s{sWs_}, {8*30720}")
                if s % 2 == 0:
                    P(f"s_lshr_b32 s30, s{sMA}, 2")
                    P(f"s_add_u32 m0, s30, {P1_HALO + (s//2)*4096}")
            it.append(P.L)
        if s % 2 == 0:
            P = Prog()
            P(f"buffer_load_dwordx4 v{vDH}, {WSR}, s{sHs} offen sc1 lds", tag=f"d{s}")
            P(f"s_add_u32 s{sHs}, s{sHs}, 4096")
            it.append(P.L)
        return it
    def fX(ks, kt): return FRA + (ks & 1)*36 + kt*4
    def fW(ks, T): return FRA + (ks & 1)*36 + 20 + T*4
    def read_items(ks):
        s, h = divmod(ks, 2)
        st = (s % 4) * 32768
        hi = st >> 16; st &= 0xffff
        P = Prog()
        order = [("W", 1), ("X", 1), ("X", 2), ("W", 0), ("X", 3), ("X", 4), ("W", 2), ("X", 0), ("W", 3)]
        for kind, i in order:
            if kind == "W": P(f"ds_read_b128 {ar(fW(ks, i))}, v{vRB + 4*hi + i} offset:{st + h*7680}")
            elif i == 0: P(f"ds_read_b128 {ar(fX(ks, 0))}, v{vRH} offset:{ks*1024}")
            else: P(f"ds_read_b128 {ar(fX(ks, i))}, v{vRA + hi} offset:{st + (i-1)*2048 + h*1024}")
        return P.L
    def mfmas(ks):
        P = Prog()
        seq = [(1,1),(1,2),(0,1),(0,2),(1,3),(0,3),(1,4),(0,4),(2,1),(2,2),(2,3),(2,4),(1,0),(2,0),(3,0),(3,1),(3,2),(3,3),(3,4)]
        for T, kt in seq:
            c = vr(acc(T, kt))
            P(f"{MF} {c}, {ar(fW(ks, T))}, {ar(fX(ks, kt))}, {c if ks else 0}")
        return P.L
    for s in (0, 1):
        for it in dma_items(s): a.extend(it)
    a.wait_vm("d0")
    a("s_barrier")
    a(f"s_lshl_b32 s60, s{sU}, 2")
    a(f"s_add_u32 s60, s60, {WS_FB}")
    a(f"s_cmp_eq_u32 s{sW}, 0")
    a(f"s_cselect_b32 s60, s60, {OOB}")
    a(f"v_mov_b32 v24, s{sEP}")
    a("s_mov_b64 exec, 1")
    a(f"buffer_store_dword v24, off, {WSR}, s60 sc1")
    a("s_mov_b64 exec, -1")
    stamp(a, cfg, "p1_first")
    a.extend(read_items(0))
    pend = dma_items(2)
    extra = cfg.p1_tail(a, cfg) if hasattr(cfg, "p1_tail") else {}
    for ks in range(20):
        if ks % 2 == 1 and ks < 19:
            s = (ks + 1) // 2
            a.wait_vm(f"d{s}")
            a("s_barrier")
            pend = dma_items(s + 2) if s + 2 < 10 else []
        if ks == 0 or ks % 2 == 0: now, pend = pend, []
        else: now, pend = pend[:len(pend)//2], pend[len(pend)//2:]
        streams = []
        if ks < 19: streams.append((read_items(ks + 1), 0, 13))
        streams.append((now, 1, 19))
        if ks in extra: streams.append((extra[ks], 1, 19))
        a.extend(weave(mfmas(ks), streams))
    stamp(a, cfg, "p1_main")
    a("s_barrier")
    attention(a, cfg, p_, hh_)

def attention(a, cfg, p_, hh_):
    QOP = 140
    KV = 156
    VX, VY = 186, 196
    BC, BP, BP0 = 4, 8, 12
    MK, ONES = 16, 20
    SC, SP = 206, 222
    POP = 24
    MX = 40
    vWA, vTX, vTY, vM0 = 44, 45, 46, 47
    vO1, vO2 = 48, 49
    pre = Prog()
    pre(f"v_lshlrev_b32 v50, 2, v{vGq}")
    pre(f"v_sub_u32 v50, v{vC}, v50")
    pre(f"v_mov_b32 v51, {f32(-1e30)}")
    pre(f"s_cmp_eq_u32 s{sG}, 0")
    pre(f"s_cselect_b32 s30, {f32(-1e30)}, 0")
    for r in range(4):
        pre(f"v_subrev_u32 v52, {r}, v50")
        pre("v_cmp_gt_u32 vcc, 8, v52")
        pre(f"v_cndmask_b32 v{BC+r}, v51, 0, vcc")
        pre("v_cmp_ge_i32 vcc, -9, v52")
        pre(f"v_cndmask_b32 v{BP+r}, v51, 0, vcc")
        pre(f"v_min_f32 v{BP0+r}, s30, v{BP+r}")
        pre("v_cmp_le_i32 vcc, 0, v52")
        pre(f"v_cndmask_b32 v{53+r}, 0, -1, vcc")
        pre(f"v_mov_b32 v{ONES+r}, 0x3f803f80")
    pre("s_mov_b32 s31, 0xffff")
    pre(f"v_bfi_b32 v{MK}, s31, v53, v54")
    pre(f"v_bfi_b32 v{MK+1}, s31, v55, v56")
    pre(f"v_cmp_eq_u32 vcc, 0, v{vGq}")
    pre(f"v_cndmask_b32 v{vM0}, 0, -1, vcc")
    pre(f"s_mul_i32 s30, s{sW}, 5120")
    pre(f"s_add_u32 s30, s30, {P1_HALO}")
    pre(f"v_lshlrev_b32 v50, 6, v{vC}")
    pre(f"v_lshl_add_u32 v50, v{vGq}, 4, v50")
    pre(f"v_add_u32 v{vWA}, s30, v50")
    pre(f"v_lshrrev_b32 v50, 2, v{vL}")
    pre("v_lshlrev_b32 v50, 6, v50")
    pre("v_add_u32 v50, s30, v50")
    pre(f"v_and_b32 v51, 3, v{vL}")
    pre("v_lshlrev_b32 v51, 3, v51")
    pre(f"v_lshrrev_b32 v52, v51, s31".replace("s31", "s32"))
    pre.L.pop()
    pre(f"s_mov_b32 s32, {24 | 56 << 8 | 32 << 16 | 32 << 24}")
    pre(f"s_mov_b32 s33, {40 | 16 << 8 | 16 << 16 | 16 << 24}")
    pre("v_bfe_u32 v52, s32, v51, 8")
    pre(f"v_add_u32 v{vTX}, v50, v52")
    pre("v_bfe_u32 v52, s33, v51, 8")
    pre(f"v_add_u32 v{vTY}, v50, v52")
    pre(f"v_mov_b32 v51, {OOB}")
    pre(f"v_cmp_gt_u32 vcc, 32, v{vL}")
    pre(f"v_cndmask_b32 v{vO1}, v51, v{vL16}, vcc")
    pre(f"v_lshlrev_b32 v50, 3, v{vC}")
    pre(f"v_cmp_eq_u32 vcc, 2, v{vGq}")
    pre(f"v_cndmask_b32 v{vO2}, v51, v50, vcc")
    pre(f"s_lshl_b32 s30, s{sG}, 1")
    pre(f"s_add_u32 s30, s30, {p_}")
    pre(f"s_mul_i32 s30, s30, {4*20480}")
    pre(f"s_add_u32 s30, s30, {WS_O}")
    pre(f"s_lshl_b32 s31, s{sJ}, 1")
    pre(f"s_add_u32 s31, s31, {hh_}")
    pre("s_lshl_b32 s32, s31, 9")
    pre("s_add_u32 s34, s30, s32")
    pre("s_lshl_b32 s32, s31, 7")
    pre("s_add_u32 s35, s30, s32")
    pre("s_add_u32 s35, s35, 16384")
    c2 = 20 ** -0.5 * math.log2(math.e)
    pre(f"s_mov_b32 s36, {f32(c2)}")
    a.extend(pre)
    b = Prog()
    def cvt2(dst, src):
        b(f"v_cvt_pk_bf16_f32 v{dst}, v{src}, v{src+1}")
        b(f"v_cvt_pk_bf16_f32 v{dst+1}, v{src+2}, v{src+3}")
    for kt in range(5):
        cvt2(KV+6*kt+2, acc(3, kt)); cvt2(KV+6*kt+4, acc(2, kt))
        b(f"ds_write_b128 v{vWA}, {vr(KV+6*kt+2)} offset:{kt*1024}", tag="vw")
    for kt in range(5): cvt2(KV+6*kt, acc(1, kt))
    for kt in range(5):
        b(f"ds_read_b64_tr_b16 {vr(VX+2*kt, 2)}, v{vTX} offset:{kt*1024}")
        b(f"ds_read_b64_tr_b16 {vr(VY+2*kt, 2)}, v{vTY} offset:{kt*1024}")
    for i in range(4):
        cvt2(QOP+4*i, acc(0, i+1))
        b(f"v_and_b32 v{QOP+4*i+2}, v{vM0}, v{KV+6*(i+1)+4}")
        b(f"v_and_b32 v{QOP+4*i+3}, v{vM0}, v{KV+6*(i+1)+5}")
        if i:
            k = i-1
            b(f"{MF} {vr(SC+4*k)}, {vr(KV+6*(k+1))}, {vr(QOP+4*k)}, {vr(BC)}")
            b(f"{MF} {vr(SP+4*k)}, {vr(KV+6*k)}, {vr(QOP+4*k)}, {vr(BP if k else BP0)}")
    k = 3
    b(f"{MF} {vr(SC+4*k)}, {vr(KV+6*(k+1))}, {vr(QOP+4*k)}, {vr(BC)}")
    b(f"{MF} {vr(SP+4*k)}, {vr(KV+6*k)}, {vr(QOP+4*k)}, {vr(BP)}")
    for i in range(4):
        for r in range(4): b(f"v_max_f32 v{SC+4*i+r}, v{SC+4*i+r}, v{SP+4*i+r}")
        b(f"v_max3_f32 v{MX+i}, v{SC+4*i}, v{SC+4*i+1}, v{SC+4*i+2}")
        b(f"v_max_f32 v{MX+i}, v{MX+i}, v{SC+4*i+3}")
    b(f"v_permlane32_swap_b32 v{MX}, v{MX+1}")
    b(f"v_permlane32_swap_b32 v{MX+2}, v{MX+3}")
    b(f"v_max_f32 v{MX}, v{MX}, v{MX+1}")
    b(f"v_max_f32 v{MX+2}, v{MX+2}, v{MX+3}")
    b(f"v_permlane16_swap_b32 v{MX}, v{MX+2}")
    b(f"v_max_f32 v{MX}, v{MX}, v{MX+2}")
    b(f"v_mul_f32 v{MX}, s36, v{MX}")
    b(f"v_mov_b32 v{MX+2}, v{MX}")
    b(f"v_permlane16_swap_b32 v{MX}, v{MX+2}")
    b(f"v_mov_b32 v{MX+1}, v{MX}")
    b(f"v_mov_b32 v{MX+3}, v{MX+2}")
    b(f"v_permlane32_swap_b32 v{MX}, v{MX+1}")
    b(f"v_permlane32_swap_b32 v{MX+2}, v{MX+3}")
    OX, OY, OS = 64, 80, 96
    for i in range(4):
        for r in range(4): b(f"v_fma_f32 v{SC+4*i+r}, v{SC+4*i+r}, s36, -v{MX+i}")
        for r in range(4): b(f"v_exp_f32 v{SC+4*i+r}, v{SC+4*i+r}")
        cvt2(POP+4*i, SC+4*i)
        for h in range(2):
            b(f"v_and_b32 v{POP+4*i+2+h}, v{MK+h}, v{POP+4*i+h}")
        for h in range(2):
            b(f"v_xor_b32 v{POP+4*i+h}, v{POP+4*i+h}, v{POP+4*i+2+h}")
        if i:
            k = i-1
            b(f"{MF} {vr(OS+4*k)}, {vr(ONES)}, {vr(POP+4*k)}, 0")
            b(f"{MF} {vr(OX+4*k)}, {vr(VX+2*k)}, {vr(POP+4*k)}, 0")
            b(f"{MF} {vr(OY+4*k)}, {vr(VY+2*k)}, {vr(POP+4*k)}, 0")
    k = 3
    b(f"{MF} {vr(OS+4*k)}, {vr(ONES)}, {vr(POP+4*k)}, 0")
    b(f"{MF} {vr(OX+4*k)}, {vr(VX+2*k)}, {vr(POP+4*k)}, 0")
    b(f"{MF} {vr(OY+4*k)}, {vr(VY+2*k)}, {vr(POP+4*k)}, 0")
    for i in range(4):
        b(f"v_rcp_f32 v{OS+4*i}, v{OS+4*i}")
        for r in range(4): b(f"v_mul_f32 v{OX+4*i+r}, v{OX+4*i+r}, v{OS+4*i}")
        for r in range(4): b(f"v_mul_f32 v{OY+4*i+r}, v{OY+4*i+r}, v{OS+4*i}")
        cvt2(QOP+4*i, OX+4*i); cvt2(QOP+4*i+2, OY+4*i)
        b(f"buffer_store_dwordx4 {vr(QOP+4*i)}, v{vO1}, {WSR}, s34 offen sc1", tag="o")
        b(f"buffer_store_dwordx2 {vr(QOP+4*i, 2)}, v{vO2}, {WSR}, s35 offen sc1", tag="o")
        if i < 3:
            b("s_add_u32 s34, s34, 20480")
            b("s_add_u32 s35, s35, 20480")
    extra = cfg.attn_fill(a, cfg) if hasattr(cfg, "attn_fill") else []
    a.extend(weave(b, [(extra, 0, int(len(b)*0.8))]))
    stamp(a, cfg, "p1_attn")


def fb_issue(a, cfg, vt):
    a(f"s_mov_b32 s63, {WS_FB}")
    a(f"buffer_load_dwordx4 {vr(vt)}, v{vL16}, {WSR}, s63 offen sc1")
def fb_check(a, cfg, vt):
    n = _lab[0]; _lab[0] += 1
    def cmp(emit):
        emit(f"v_xor_b32 v{vt}, s{sEP}, v{vt}")
        emit(f"v_xor_b32 v{vt+1}, s{sEP}, v{vt+1}")
        emit(f"v_xor_b32 v{vt+2}, s{sEP}, v{vt+2}")
        emit(f"v_xor_b32 v{vt+3}, s{sEP}, v{vt+3}")
        emit(f"v_or3_b32 v{vt}, v{vt}, v{vt+1}, v{vt+2}")
        emit(f"v_or_b32 v{vt}, v{vt}, v{vt+3}")
        emit(f"v_cmp_ne_u32 vcc, 0, v{vt}")
    cmp(a)
    a("s_mov_b32 s60, 0")
    a(f"s_cbranch_vccz L_fbx{n}")
    a.label(f"L_fb{n}")
    a.raw(f"    buffer_load_dwordx4 {vr(vt)}, v{vL16}, {WSR}, s63 offen sc1")
    a.raw("    s_add_u32 s60, s60, 1")
    a.raw(f"    s_cmp_gt_u32 s60, {cfg.spin}")
    a.raw(f"    s_cbranch_scc1 L_fbx{n}")
    a.raw("    s_waitcnt vmcnt(0)")
    cmp(lambda t: a.raw("    " + t))
    a.raw("    s_nop 1")
    a.raw(f"    s_cbranch_vccnz L_fb{n}")
    a.label(f"L_fbx{n}")
    a(f"s_or_b32 s60, s{sU}, s{sW}")
    a(f"s_cselect_b32 s60, {OOB}, {WS_EPOCH}")
    a(f"v_mov_b32 v{vt}, s{sEP}")
    a("s_mov_b64 exec, 1")
    a(f"buffer_store_dword v{vt}, off, {WSR}, s60 sc1")
    a("s_mov_b64 exec, -1")

vB3, vB24 = 60, 61
sB3, sB2, sB4 = 50, 51, 52
LD_B2, LD_XR = 0, 102400
LD_H, LD_ST = 140288, 161792
RS = 336

def b_setup(a, cfg):
    if cfg.psmode == 0:
        a(f"s_lshr_b32 s{sP}, s{sJ}, 3")
        a(f"s_and_b32 s{sS}, s{sJ}, 7")
    a(f"v_lshlrev_b32 v{vB24}, 4, v{vC}")
    a("s_mov_b32 s30, 49152")
    a(f"v_mad_u32_u24 v{vB3}, v{vGq}, s30, v{vB24}")
    a("s_movk_i32 s30, 10240")
    a(f"v_mad_u32_u24 v{vB24}, v{vGq}, s30, v{vB24}")
    a(f"s_lshl_b32 s30, s{sJ}, 2")
    a(f"s_add_u32 s30, s30, s{sW}")
    a(f"s_mul_i32 s{sB3}, s30, 768")
    a(f"s_add_u32 s{sB3}, s{sB3}, {WS_W13}")
    a(f"s_mul_i32 s30, s{sS}, 1280")
    a(f"s_mul_i32 s{sB2}, s{sW}, {5*40960}")
    a(f"s_add_u32 s{sB2}, s{sB2}, s30")
    a(f"s_add_u32 s{sB2}, s{sB2}, {WS_WO}")
    a(f"s_mul_i32 s{sB4}, s{sW}, {12*40960}")
    a(f"s_add_u32 s{sB4}, s{sB4}, s30")
    a(f"s_add_u32 s{sB4}, s{sB4}, {WS_W2}")

def b3_items(lo, hi):
    it = []
    for f in range(lo, hi):
        ks, t = divmod(f, 3)
        P = Prog()
        P(f"buffer_load_dwordx4 {ar(4*f)}, v{vB3}, {WSR}, s{sB3} offen offset:{t*256} sc1", tag="b3")
        if t == 2: P(f"s_add_u32 s{sB3}, s{sB3}, {4*49152}")
        it.append(P.L)
    return it

def b2_items(a, cfg):
    vXR = 57
    a(f"s_lshl_b32 s30, s{sG}, 7")
    a(f"s_lshl_b32 s31, s{sW}, 5")
    a("s_add_u32 s30, s30, s31")
    a(f"s_add_u32 s30, s30, s{sP}")
    a("s_mul_i32 s53, s30, 1280")
    a(f"s_mul_i32 s31, s{sS}, 160")
    a("s_add_u32 s53, s53, s31")
    srd(a, sA, "x", S*D*2)
    a("s_movk_i32 s30, 6554")
    a("s_movk_i32 s31, 2560")
    for k in range(3):
        a(f"v_add_u32 v62, {64*k}, v{vL}")
        a("v_mul_u32_u24 v63, s30, v62")
        a("v_lshrrev_b32 v63, 16, v63")
        a(f"v_mul_u32_u24 v{vXR+k}, 10, v63")
        a(f"v_sub_u32 v{vXR+k}, v62, v{vXR+k}")
        a(f"v_lshlrev_b32 v{vXR+k}, 4, v{vXR+k}")
        a(f"v_mad_u32_u24 v{vXR+k}, v63, s31, v{vXR+k}")
        if k: a(f"v_subrev_u32 v{vXR+k}, {1024*k}, v{vXR+k}")
    a(f"v_cmp_gt_u32 vcc, 32, v{vL}")
    a(f"v_mov_b32 v62, {OOB}")
    a(f"v_cndmask_b32 v{vXR+2}, v62, v{vXR+2}, vcc")
    a(f"s_mul_i32 s54, s{sW}, 3072")
    a(f"s_mul_i32 s55, s{sW}, 25600")
    it = []
    for f in range(25):
        ks, t = divmod(f, 5)
        P = Prog()
        P(f"s_add_u32 m0, s55, {LD_B2 + f*1024 - t*256}")
        P(f"buffer_load_dwordx4 v{vB24}, {WSR}, s{sB2} offen offset:{t*256} sc1 lds", tag="b2")
        if t == 4: P(f"s_add_u32 s{sB2}, s{sB2}, 40960")
        it.append(P.L)
    for k in range(3):
        P = Prog()
        if k == 0: P(f"s_add_u32 m0, s54, {LD_XR}")
        P(f"buffer_load_dwordx4 v{vXR+k}, s[{sA}:{sA+3}], s53 offen offset:{1024*k} lds", tag="b2")
        it.append(P.L)
    return it

def group_wait(a, cfg, base, val_s, vaddr, vt, wave=1):
    a(f"s_lshl_b32 s62, s{sG}, 11")
    a(f"s_add_u32 s62, s62, {base}")
    a(f"v_lshlrev_b32 v{vaddr}, 7, v{vC}")
    lab = poll(a, cfg, wave, vaddr, "s62", 1, [f"v_cmp_ne_u32 vcc, s{val_s}, v{vt}"], vt)
    a.label(lab)
    a("s_barrier")

def phase2(a, cfg):
    AF, AC, BR, NB = 172, 4, 64, 27
    n1, n2, n3, n4 = cfg.b3split
    for it in b3_items(n1, n1 + n2): a.extend(it)
    a.wait_vm("o", "b2")
    a("s_barrier")
    signal(a, cfg, WS_F1, sEP, 24)
    stamp(a, cfg, "p2_sig")
    a(f"v_mul_u32_u24 v24, 160, v{vC}")
    a(f"v_lshl_add_u32 v24, v{vGq}, 3, v24")
    a("v_add_u32 v24, s54, v24")
    a(f"v_add_u32 v24, {LD_XR}, v24")
    for t in range(5): a(f"ds_read_b64 {vr(26+2*t, 2)}, v24 offset:{t*32}")
    a(f"v_add_u32 v25, 0x10000, v{vL16}")
    def bread(f):
        off = LD_B2 + f*1024
        return Ins(f"ds_read_b128 {vr(BR + 4*(f % NB))}, v{25 if off >= 65536 else vL16} offset:{off & 0xffff}")
    for t in range(5):
        for h in range(2):
            a(f"v_lshlrev_b32 v{AC+4*t+2*h}, 16, v{26+2*t+h}")
            a(f"v_and_b32 v{AC+4*t+2*h+1}, 0xffff0000, v{26+2*t+h}")
    a.extend([bread(f) for f in range(NB)])
    a(f"s_lshl_b32 s30, s{sG}, 3")
    a(f"s_lshl_b32 s31, s{sP}, 2")
    a("s_add_u32 s30, s30, s31")
    a(f"s_add_u32 s56, s30, s{sW}")
    a("s_mul_i32 s30, s56, 20480")
    a(f"s_add_u32 s32, s30, {WS_O}")
    a(f"s_add_u32 s33, s32, 16384")
    a(f"s_mul_i32 s31, s{sS}, 2560")
    a("s_add_u32 s34, s30, s31")
    a(f"s_add_u32 s34, s34, {WS_H}")
    a("s_lshl_b32 s35, s56, 3")
    a(f"s_add_u32 s35, s35, s{sS}")
    a("s_lshl_b32 s35, s35, 7")
    a(f"s_add_u32 s35, s35, {WS_ST}")
    a(f"v_lshlrev_b32 v36, 3, v{vL}")
    a(f"v_lshrrev_b32 v37, 1, v{vGq}")
    a(f"v_lshlrev_b32 v38, 4, v{vC}")
    a("v_lshl_add_u32 v38, v37, 8, v38")
    a(f"v_and_b32 v39, 1, v{vGq}")
    a("v_lshl_add_u32 v38, v39, 3, v38")
    a("v_lshlrev_b32 v37, 6, v37")
    a(f"v_lshl_add_u32 v37, v{vC}, 2, v37")
    a("v_cmp_eq_u32 vcc, 0, v39")
    a(f"v_mov_b32 v39, {OOB}")
    a("v_cndmask_b32 v37, v39, v37, vcc")
    group_wait(a, cfg, WS_F1, sEP, 40, 41)
    stamp(a, cfg, "p2_go")
    for wq in range(4):
        for m in range(4):
            a(f"buffer_load_dwordx4 {vr(AF + 4*(5*wq+m))}, v{vL16}, {WSR}, s32 offen offset:{m*1024} sc1")
        r = AF + 4*(5*wq+4)
        a(f"buffer_load_dwordx2 {vr(r, 2)}, v36, {WSR}, s33 offen offset:{wq*1024} sc1")
        a(f"buffer_load_dwordx2 {vr(r+2, 2)}, v36, {WSR}, s33 offen offset:{wq*1024+512} sc1")
        if wq < 3: a("s_add_u32 s32, s32, 4096")
    M = Prog()
    for f in range(100):
        ks, t = divmod(f, 5)
        M(f"{MF} {vr(AC+4*t)}, {vr(BR + 4*(f % NB))}, {vr(AF+4*ks)}, {vr(AC+4*t)}")
    a.extend(weave(M, [([bread(f) for f in range(NB, 100)], 0, 100 - NB), (b3_items(n1+n2, n1+n2+n3), 20, 100)]))
    stamp(a, cfg, "p2_main")
    HP = 26
    for t in range(5):
        a(f"v_cvt_pk_bf16_f32 v{HP+2*t}, v{AC+4*t}, v{AC+4*t+1}")
        a(f"v_cvt_pk_bf16_f32 v{HP+2*t+1}, v{AC+4*t+2}, v{AC+4*t+3}")
        if t == 1: a(f"buffer_store_dwordx4 {vr(HP)}, v{vL16}, {WSR}, s34 offen sc1", tag="h")
        if t == 3: a(f"buffer_store_dwordx4 {vr(HP+4)}, v{vL16}, {WSR}, s34 offen offset:1024 sc1", tag="h")
        if t == 4: a(f"buffer_store_dwordx2 {vr(HP+8, 2)}, v38, {WSR}, s34 offen offset:2048 sc1", tag="h")
    a(f"v_add_f32 v40, v{AC}, v{AC+1}")
    a(f"v_mul_f32 v41, v{AC}, v{AC}")
    a(f"v_add_f32 v42, v{AC+2}, v{AC+3}")
    a(f"v_mul_f32 v43, v{AC+1}, v{AC+1}")
    for k in range(2, 20):
        if k >= 4: a(f"v_add_f32 v{40 + 2*(k&1)}, v{40 + 2*(k&1)}, v{AC+k}")
        a(f"v_fmac_f32 v{41 + 2*(k&1)}, v{AC+k}, v{AC+k}")
    a("v_add_f32 v40, v40, v42")
    a("v_add_f32 v41, v41, v43")
    a("v_permlane32_swap_b32 v40, v41")
    a("v_add_f32 v40, v40, v41")
    a("v_mov_b32 v41, v40")
    a("v_permlane16_swap_b32 v41, v40")
    a("v_add_f32 v40, v40, v41")
    a(f"buffer_store_dword v40, v37, {WSR}, s35 offen sc1", tag="h")
    stamp(a, cfg, "p2_stored")
    for it in b3_items(n1+n2+n3, n1+n2+n3+n4): a.extend(it)
    a(f"v_mul_u32_u24 v24, {RS}, v{vC}")
    a(f"v_lshl_add_u32 v24, v{vGq}, 4, v24")
    a(f"s_mul_i32 s30, s{sW}, {16*RS}")
    a(f"s_add_u32 s30, s30, {LD_H}")
    a("v_add_u32 v24, s30, v24")
    for t in range(5): a(f"ds_write_b128 v24, {vr(AC+4*t)} offset:{t*64}")
    a.wait_vm("h")
    a("s_barrier")
    signal(a, cfg, WS_F2, sEP, 25)
    stamp(a, cfg, "p3_sig")

def phase3(a, cfg):
    CS, ONES, AC, AF, STV, TMP, PK = 4, 16, 64, 88, 128, 28, 44
    NSL = 3
    nb = sum(cfg.b3split)
    for it in b3_items(nb, 60): a.extend(it)
    for r in range(4): a(f"v_mov_b32 v{ONES+r}, 0x3f803f80")
    Tof = lambda tau: 4*(tau & 1) + (tau >> 1)
    a(f"s_mul_i32 s30, s{sG}, {8*20480}")
    a(f"s_mul_i32 s31, s{sW}, 5120")
    a("s_add_u32 s40, s30, s31")
    a(f"s_add_u32 s40, s40, {WS_H}")
    a("s_mov_b32 s41, s31")
    a(f"v_add_u32 v24, 4096, v{vL16}")
    a(f"v_lshrrev_b32 v25, 1, v{vGq}")
    a(f"v_and_b32 v26, 31, v{vL}")
    a("v_lshlrev_b32 v26, 2, v26")
    a("v_lshl_add_u32 v26, v25, 10, v26")
    a(f"s_lshl_b32 s30, s{sG}, 2")
    a(f"s_add_u32 s30, s30, s{sW}")
    a("s_lshl_b32 s42, s30, 11")
    a(f"s_add_u32 s42, s42, {WS_ST}")
    a(f"s_lshl_b32 s30, s{sW}, 9")
    a(f"s_add_u32 s30, s30, {LD_ST}")
    a(f"v_lshlrev_b32 v27, 4, v{vC}")
    a(f"v_add_u32 v56, {LD_ST}, v27")
    a("v_lshl_add_u32 v27, v25, 8, v27")
    a("v_add_u32 v27, s30, v27")
    a(f"v_cmp_gt_u32 vcc, 48, v{vL}")
    a(f"v_mov_b32 v57, {OOB}")
    a(f"v_cndmask_b32 v57, v57, v{vL16}, vcc")
    a(f"s_mul_i32 s43, s{sG}, {8*49152}")
    a(f"s_lshl_b32 s30, s{sJ}, 2")
    a(f"s_add_u32 s30, s30, s{sW}")
    a("s_mul_i32 s30, s30, 768")
    a("s_add_u32 s43, s43, s30")
    a(f"s_add_u32 s43, s43, {WS_HH}")
    for t in range(3):
        for ks in range(20):
            a(f"{MF} {vr(CS+4*t)}, {ar(4*(3*ks+t))}, {vr(ONES)}, {vr(CS+4*t) if ks else 0}")
    stamp(a, cfg, "p3_cs")
    group_wait(a, cfg, WS_F2, sEP, 58, 59)
    stamp(a, cfg, "p3_go")
    for s in range(8): a(f"buffer_load_dword v{TMP+s}, v26, {WSR}, s42 offen offset:{s*128} sc1")
    def dma(tau):
        sl = (tau % NSL) * 20480
        it = []
        for k in range(5):
            P = Prog()
            if k == 0:
                P(f"s_add_u32 s44, s40, {Tof(tau)*20480}")
                P(f"s_add_u32 m0, s41, {sl}")
            if k == 4: P(f"s_add_u32 m0, s41, {sl + 4096}")
            P(f"buffer_load_dwordx4 v{24 if k == 4 else vL16}, {WSR}, s44 offen offset:{(k & 3)*1024} sc1 lds", tag=f"a{tau}")
            it.append(P.L)
        return it
    for tau in (0, 1):
        for it in dma(tau): a.extend(it)
    for s in range(1, 8): a(f"v_add_f32 v{TMP}, v{TMP}, v{TMP+s}")
    a(f"v_mul_f32 v{TMP}, {f32(1.0/D)}, v{TMP}")
    a(f"v_mov_b32 v{TMP+1}, v{TMP}")
    a(f"v_permlane16_swap_b32 v{TMP}, v{TMP+1}")
    a(f"v_fma_f32 v{TMP+1}, -v{TMP}, v{TMP}, v{TMP+1}")
    a(f"v_max_f32 v{TMP+1}, 0, v{TMP+1}")
    a(f"v_add_f32 v{TMP+1}, {f32(1e-5)}, v{TMP+1}")
    a(f"v_rsq_f32 v{TMP+3}, v{TMP+1}")
    a(f"v_sub_f32 v{TMP}, 0, v{TMP}")
    a(f"v_mul_f32 v{TMP+1}, {f32(-math.log2(math.e))}, v{TMP+3}")
    a(f"v_mul_f32 v{TMP+2}, v{TMP+3}, v{TMP+3}")
    a(f"ds_write_b128 v27, {vr(TMP)}")
    a.wait_vm("a0")
    a.wait_lg()
    a("s_barrier")
    stamp(a, cfg, "p3_first")
    def aread(tau, grp):
        gi = tau*4 + grp
        return [Ins(f"ds_read_b128 {vr(AF + 20*(gi & 1) + 4*k)}, v{vL16} offset:{(tau % NSL)*20480 + (5*grp+k)*1024}") for k in range(5)]
    def stread(tau): return Ins(f"ds_read_b64 {vr(STV + 2*(tau % 3), 2)}, v56 offset:{Tof(tau)*256}")
    def init(tau): return [Ins(f"v_mul_f32 v{AC + 12*(tau & 1) + r}, v{STV + 2*(tau % 3)}, v{CS + r}") for r in range(12)]
    def epi(tau):
        P = Prog()
        c = AC + 12*(tau & 1); av = STV + 2*(tau % 3) + 1
        idx = [(t, b) for t in range(3) for b in range(2)]
        for n, (t, b) in enumerate(idx): P(f"v_mul_f32 v{TMP+n}, v{av}, v{c+4*t+b}")
        for n, (t, b) in enumerate(idx): P(f"v_exp_f32 v{TMP+n}, v{TMP+n}")
        for n, (t, b) in enumerate(idx): P(f"v_mul_f32 v{TMP+6+n}, v{c+4*t+b}, v{c+4*t+2+b}")
        for n in range(6): P(f"v_add_f32 v{TMP+n}, 1.0, v{TMP+n}")
        for n in range(6): P(f"v_rcp_f32 v{TMP+n}, v{TMP+n}")
        for n in range(6): P(f"v_mul_f32 v{TMP+6+n}, v{TMP+6+n}, v{TMP+n}")
        pk = PK + 4*(tau & 1)
        for t in range(3): P(f"v_cvt_pk_bf16_f32 v{pk+t}, v{TMP+6+2*t}, v{TMP+7+2*t}")
        P(f"s_add_u32 s45, s43, {Tof(tau)*49152}")
        P(f"v_permlane32_swap_b32 v{pk}, v{pk+2}")
        P(f"v_permlane32_swap_b32 v{pk+1}, v{pk+3}")
        P(f"v_permlane16_swap_b32 v{pk}, v{pk+1}")
        P(f"v_permlane16_swap_b32 v{pk+2}, v{pk+3}")
        P(f"buffer_store_dwordx4 {vr(pk)}, v57, {WSR}, s45 offen sc1", tag="hh")
        return P.L
    a.extend([stread(0), stread(1)])
    a.extend(aread(0, 0))
    a.extend(init(0))
    extra = cfg.p3_fill(a, cfg) if hasattr(cfg, "p3_fill") else {}
    for tau in range(8):
        M = Prog()
        for grp in range(4):
            gi = tau*4 + grp
            for t in range(3):
                for k in range(5):
                    c = vr(AC + 12*(tau & 1) + 4*t)
                    M(f"{MF} {c}, {ar(4*(3*(5*grp+k)+t))}, {vr(AF + 20*(gi & 1) + 4*k)}, {c}")
        streams = []
        for grp in range(3): streams.append((aread(tau, grp+1), 15*grp, 15*grp + 9))
        if tau + 2 < 8: streams.append((dma(tau + 2), 2, 40))
        ep = epi(tau - 1) if tau else []
        nxt = []
        if tau < 7:
            W = Prog(); W.wait_vm(f"a{tau+1}"); W.wait_lg(); W("s_barrier")
            streams.append(([W.L] + aread(tau + 1, 0), 45, 54))
            nxt = init(tau + 1)
            if tau + 2 < 8: streams.append(([stread(tau + 2)], 56, 57))
        streams.append((ep + nxt, 3, 57))
        if tau in extra: streams.append((extra[tau], 2, 58))
        a.extend(weave(M, streams))
    stamp(a, cfg, "p3_main")
    cfg.p3_last_epi = epi(7)

def phase4(a, cfg):
    AF, AC, PR, FT = 64, 160, 200, 4
    def b4(f):
        m, t = divmod(f, 5)
        P = Prog()
        P(f"buffer_load_dwordx4 {ar(4*f)}, v{vB24}, {WSR}, s{sB4} offen offset:{t*256} sc1", tag="b4")
        if t == 4: P(f"s_add_u32 s{sB4}, s{sB4}, 40960")
        return P.L
    a.extend(cfg.p3_last_epi)
    for f in range(8): a.extend(b4(f))
    a.wait_vm("hh")
    a("s_barrier")
    signal(a, cfg, WS_F3, sEP, 24)
    stamp(a, cfg, "p4_sig")
    for f in range(8, 60): a.extend(b4(f))
    a(f"s_sub_u32 s30, s56, s{sW}")
    a("s_mul_i32 s40, s30, 49152")
    a(f"s_mul_i32 s31, s{sW}, {48*256}")
    a("s_add_u32 s40, s40, s31")
    a(f"s_add_u32 s40, s40, {WS_HH}")
    a(f"v_mul_u32_u24 v24, {RS}, v{vC}")
    a(f"v_lshl_add_u32 v24, v{vGq}, 4, v24")
    a(f"s_mul_i32 s30, s{sW}, {16*RS}")
    a("v_add_u32 v24, s30, v24")
    a(f"s_lshl_b32 s30, s{sW}, 2")
    a(f"v_add_u32 v25, s30, v{vGq}")
    a(f"v_min_u32 v26, 9, v{vC}")
    a(f"v_mul_u32_u24 v27, {RS}, v25")
    a("v_lshl_add_u32 v27, v26, 5, v27")
    a(f"v_add_u32 v28, {LD_H}, v27")
    a(f"s_lshl_b32 s30, s{sP}, 10")
    a(f"s_add_u32 s30, s30, {LD_ST + 8}")
    a("v_lshl_add_u32 v29, v25, 4, s30")
    a("v_mul_u32_u24 v30, 2560, v25")
    a("v_lshl_add_u32 v30, v26, 4, v30")
    a(f"v_cmp_gt_u32 vcc, 10, v{vC}")
    a(f"v_mov_b32 v31, {OOB}")
    a("v_cndmask_b32 v30, v31, v30, vcc")
    a(f"s_mul_i32 s30, s{sW}, {32*1280}")
    a("s_sub_u32 s41, s53, s30")
    srd(a, sA, "out", S*D*2)
    group_wait(a, cfg, WS_F3, sEP, 32, 33)
    stamp(a, cfg, "p4_go")
    def aload(i):
        it = []
        for m in range(12):
            P = Prog()
            if m % 4 == 0: P(f"s_add_u32 s44, s40, {i*49152 + m*1024}")
            P(f"buffer_load_dwordx4 {vr(AF + 48*(i & 1) + 4*m)}, v{vL16}, {WSR}, s44 offen offset:{(m & 3)*1024} sc1")
            it.append(P.L)
        return it
    PB = 4*16*RS
    def pwrite(i): return [Ins(f"ds_write_b128 v24, {vr(AC + 20*(i & 1) + 4*t)} offset:{(i & 1)*PB + t*64}") for t in range(5)]
    def final(i):
        P = Prog()
        for pw in range(4):
            for h in range(2): P(f"ds_read_b128 {vr(PR + 8*pw + 4*h)}, v27 offset:{(i & 1)*PB + pw*16*RS + 16*h}")
        for h in range(2): P(f"ds_read_b128 {vr(PR + 32 + 4*h)}, v28 offset:{i*16*RS + 16*h}")
        P(f"ds_read_b32 v{FT}, v29 offset:{i*256}")
        for e in range(8): P(f"v_add_f32 v{PR+e}, v{PR+e}, v{PR+8+e}")
        for e in range(8): P(f"v_add_f32 v{PR+16+e}, v{PR+16+e}, v{PR+24+e}")
        for e in range(8): P(f"v_add_f32 v{PR+e}, v{PR+e}, v{PR+16+e}")
        for e in range(8): P(f"v_fma_f32 v{PR+e}, v{PR+e}, v{FT}, v{PR+32+e}")
        o = FT + 4 + 4*(i & 1)
        for e in range(4): P(f"v_cvt_pk_bf16_f32 v{o+e}, v{PR+2*e}, v{PR+2*e+1}")
        P(f"s_add_u32 s45, s41, {i*32*1280}")
        P(f"buffer_store_dwordx4 {vr(o)}, v30, s[{sA}:{sA+3}], s45 offen")
        return P.L
    for i in (0, 1):
        for it in aload(i): a.extend(it)
    for i in range(4):
        M = Prog()
        for half in range(2):
            for t in range(5):
                for k in range(6):
                    m = 6*half + k
                    c = vr(AC + 20*(i & 1) + 4*t)
                    M(f"{MF} {c}, {ar(4*(5*m+t))}, {vr(AF + 48*(i & 1) + 4*m)}, {c if m else 0}")
        streams = []
        if i:
            W = Prog(); W.wait_lg(); W("s_barrier")
            streams.append((pwrite(i-1) + [W.L], 4, 16))
            streams.append((final(i-1), 17, 58))
        if 1 <= i <= 2: streams.append((aload(i+1), 0, 30))
        a.extend(weave(M, streams))
    stamp(a, cfg, "p4_main")
    a.extend(pwrite(3))
    a.wait_lg()
    a("s_barrier")
    a.extend(final(3))

def p1_tail(a, cfg):
    b_setup(a, cfg)
    n1 = cfg.b3split[0]
    P = Prog(); fb_issue(P, cfg, 24)
    Q = Prog(); fb_check(Q, cfg, 24)
    it = b3_items(0, n1)
    q = (n1 + 3) // 4
    return {11: [P.L], 15: [Q.L], 16: it[:q], 17: it[q:2*q], 18: it[2*q:3*q], 19: it[3*q:]}
gen1.Cfg.p1_tail = staticmethod(p1_tail)
gen1.Cfg.attn_fill = staticmethod(b2_items)
gen1.Cfg.b3split = (12, 8, 12, 8)

PHASES = [phase1, phase2, phase3, phase4]
```

```python
import math, sys
sys.path.insert(0, "work")
from asmgen import *

NAME = "sequential_preLN__sliding_local_dilated__glu_gated_swiglu__prompt"
KN = NAME + "_kernel"
S, D, F = 2048, 640, 1536
WS_EPOCH = 0x0
WS_FA, WS_FB, WS_F1, WS_F2, WS_F3 = 0x8000, 0x10000, 0x18000, 0x20000, 0x28000
WS_ST = 0x40000
WS_TS = 0x80000
WS_XN, WS_WQ, WS_WO, WS_W13, WS_W2 = 0x100000, 0x400000, 0x700000, 0x800000, 0xC00000
WS_O, WS_H, WS_HH, WS_END = 0xE00000, 0x1100000, 0x1400000, 0x1A00000
OOB = 0x7ff00000
EPOCH_STEP = 0x9E3779B0
LDS_BYTES = 160 * 1024
sWS = 4
sA, sB, sC = 8, 12, 16
sW, sG, sJ, sU, sEP, sFAST = 20, 21, 22, 23, 24, 25
sP, sHH_, sS = 26, 27, 28
sTS = 29
PTR = dict(x=64, wqkv=66, wo=68, bx=70, w1=72, w3=74, w2=76, out=78, dbg=80, ws=82)
vL, vC, vGq, vL16 = 0, 1, 2, 3

class Cfg:
    stop = 99
    stamps = False
    spin = 400000
    force_slow = False
    nx = 2
    rt = 0
    psmode = 0

def f32(x):
    import struct
    return hex(struct.unpack("<I", struct.pack("<f", x))[0])

def srd(a, r, ptr, nbytes):
    a(f"s_mov_b32 s{r}, s{PTR[ptr]}")
    a(f"s_mov_b32 s{r+1}, s{PTR[ptr]+1}")
    a(f"s_mov_b32 s{r+2}, {nbytes}")
    a(f"s_mov_b32 s{r+3}, 0x20000")

def sdiv(a, dst, src, d, maxv):
    m = (65536 + d - 1) // d
    assert all((x * m) >> 16 == x // d for x in range(maxv + 1)), (d, maxv)
    a(f"s_mul_i32 s{dst}, s{src}, {m}")
    a(f"s_lshr_b32 s{dst}, s{dst}, 16")

_stamp_n = [0]
def stamp(a, cfg, name):
    if not cfg.stamps: return
    only = getattr(cfg, "only", None)
    if only is not None:
        if name not in only: return
        k = only.index(name)
        i = a(f"{'s_memrealtime' if cfg.rt else 's_memtime'} s[{88+2*k}:{89+2*k}]")
        return
    k = _stamp_n[0]; _stamp_n[0] += 1
    cfg.stamp_names.append(name)
    if getattr(cfg, "only", None) is not None:
        return
    a(f"s_memtime s[{84}:{85}]")
    a("s_waitcnt lgkmcnt(0)")
    a(f"v_writelane_b32 v255, s84, {k}")

def stamp_flush(a, cfg):
    if not cfg.stamps: return
    if getattr(cfg, "only", None) is not None:
        a(f"{'s_memrealtime' if cfg.rt else 's_memtime'} s[84:85]")
        a("s_waitcnt lgkmcnt(0)")
        a("v_mov_b32 v255, 0")
        for k in range(len(cfg.only)): a(f"v_writelane_b32 v255, s{88+2*k}, {k}")
        a(f"v_writelane_b32 v255, s84, {len(cfg.only)}")
        cfg.stamp_names = list(cfg.only) + ["end"]
    a("s_memrealtime s[84:85]")
    a("s_waitcnt lgkmcnt(0)")
    a("v_writelane_b32 v255, s84, 63")
    a(f"v_writelane_b32 v255, s86, 62")
    a(f"s_lshl_b32 s84, s2, 2")
    a(f"s_add_u32 s84, s84, s{sW}")
    a(f"s_lshl_b32 s84, s84, 8")
    a(f"s_add_u32 s84, s84, {WS_TS}")
    a(f"v_lshlrev_b32 v254, 2, v{vL}")
    a(f"buffer_store_dword v255, v254, s[{sWS}:{sWS+3}], s84 offen")

def setup(a, cfg):
    a("s_cmp_ge_u32 s2, 256")
    a("s_cbranch_scc1 L_end")
    a("s_load_dwordx16 s[64:79], s[0:1], 0")
    a("s_load_dwordx4 s[80:83], s[0:1], 64")
    if cfg.stamps:
        a("s_memrealtime s[86:87]")
        a("v_mov_b32 v255, 0")
        stamp(a, cfg, "start")
    a("v_lshrrev_b32 v4, 6, v0")
    a(f"v_and_b32 v{vL}, 63, v0")
    a(f"v_readfirstlane_b32 s{sW}, v4")
    a(f"v_and_b32 v{vC}, 15, v{vL}")
    a(f"v_lshrrev_b32 v{vGq}, 4, v{vL}")
    a(f"v_lshlrev_b32 v{vL16}, 4, v{vL}")
    lg = {1: 0, 2: 1, 4: 2}[cfg.nx]
    a("s_and_b32 s30, s2, 7")
    a("s_lshr_b32 s31, s2, 3")
    a(f"s_and_b32 s{sJ}, s31, {16//cfg.nx - 1}")
    if lg:
        a(f"s_and_b32 s32, s30, {cfg.nx - 1}")
        a(f"s_lshl_b32 s32, s32, {4 - lg}")
        a(f"s_or_b32 s{sJ}, s{sJ}, s32")
        a(f"s_lshr_b32 s30, s30, {lg}")
    a(f"s_lshr_b32 s31, s31, {4 - lg}")
    a(f"s_lshl_b32 s30, s30, {1 + lg}")
    a(f"s_add_u32 s{sG}, s30, s31")
    a(f"s_lshl_b32 s{sU}, s{sG}, 4")
    a(f"s_add_u32 s{sU}, s{sU}, s{sJ}")
    a(f"s_and_b32 s{sP}, s{sJ}, 1")
    a(f"s_lshr_b32 s{sS}, s{sJ}, 1")

P0_X, P0_UA, P0_UB, P0_SX = 0, 12288, 28672, 61440

def unit_trreads(a, dst, vaddr, base_off, tag=None):
    for t in range(4):
        for h in range(2):
            r = dst + 4*t + 2*h
            a(f"ds_read_b64_tr_b16 v[{r}:{r+1}], v{vaddr+t} offset:{base_off + h*512}")

def phase0(a, cfg):
    vE, vPp, vEhi, vElo, vChunk = 4, 5, 6, 7, 8
    a(f"v_lshrrev_b32 v{vE}, 3, v{vL}")
    a(f"v_and_b32 v{vPp}, 7, v{vL}")
    a(f"s_and_b32 s30, s{sS}, 3")
    a("s_lshl_b32 s30, s30, 5")
    a(f"s_lshr_b32 s31, s{sS}, 2")
    a("s_add_u32 s30, s30, s31")
    a(f"s_lshl_b32 s31, s{sP}, 4")
    a("s_add_u32 s30, s30, s31")
    a(f"s_lshl_b32 s31, s{sG}, 7")
    a("s_add_u32 s30, s30, s31")
    a("s_mul_i32 s30, s30, 1280")
    a(f"s_sub_u32 s32, 3, s{sW}")
    a("s_lshl_b32 s31, s32, 7")
    a("s_add_u32 s30, s30, s31")
    a(f"v_xor_b32 v9, v{vE}, v{vPp}")
    a("v_lshlrev_b32 v9, 4, v9")
    a(f"v_mad_u32_u24 v9, v{vE}, s{'33'}, v9".replace("s33", "s33"))
    a.L.pop()
    a("s_movk_i32 s33, 2560")
    a(f"v_mad_u32_u24 v9, v{vE}, s33, v9")
    sdiv(a, 34, sU, 20, 255)
    a("s_mul_i32 s35, s34, 20")
    a(f"s_sub_u32 s35, s{sU}, s35")
    sdiv(a, 36, 35, 5, 19)
    a("s_mul_i32 s37, s36, 5")
    a("s_sub_u32 s37, s35, s37")
    a("s_mul_i32 s36, s36, 160")
    a("s_mul_i32 s38, s37, 40")
    a("s_cmp_eq_u32 s37, 4")
    a("s_cselect_b32 s38, 16, s38")
    a("s_cselect_b32 s39, 40, 20")
    a("s_cselect_b32 s40, 20, 8")
    a("s_cselect_b32 s41, 80, 4")
    a("s_add_u32 s38, s38, s36")
    a("s_lshl_b32 s36, s35, 5")
    a(f"s_mul_i32 s42, s{sW}, 10")
    a("s_add_u32 s42, s42, s34")
    a(f"s_cmp_eq_u32 s{sW}, 3")
    a("s_cselect_b32 s38, s38, s36")
    a("s_cselect_b32 s39, s39, 16")
    a("s_cselect_b32 s40, s40, 8")
    a("s_cselect_b32 s41, s41, 4")
    a("s_cselect_b32 s42, s34, s42")
    a("s_movk_i32 s43, 3840")
    a("s_cselect_b32 s43, 1280, s43")
    a(f"s_mov_b32 s44, {WS_WQ}")
    a(f"s_cselect_b32 s44, {WS_WO}, s44")
    stamp(a, cfg, "p0_prekarg")
    a.wait_lg()
    stamp(a, cfg, "p0_karg")
    a(f"s_cselect_b32 s{sB}, s{PTR['wo']}, s{PTR['wqkv']}")
    a(f"s_cselect_b32 s{sB+1}, s{PTR['wo']+1}, s{PTR['wqkv']+1}")
    a(f"s_mul_i32 s{sB+2}, s43, 640")
    a(f"s_mov_b32 s{sB+3}, 0x20000")
    a(f"s_cmp_lt_u32 s{sU}, 200")
    a(f"s_cselect_b32 s{sB+2}, s{sB+2}, 0")
    a(f"s_cselect_b32 s44, s44, {OOB}")
    srd(a, sA, "x", S*D*2)
    srd(a, sWS, "ws", WS_END)
    stamp(a, cfg, "p0_prexissue")
    a(f"s_lshl_b32 s45, s32, 10")
    for k in range(3):
        if k == 2:
            a("s_cmp_lt_u32 s32, 2")
            a(f"s_cselect_b32 s30, s30, {OOB}")
        a(f"s_add_u32 m0, s45, {P0_X + k*4096 - k*512}")
        a(f"buffer_load_dwordx4 v9, s[{sA}:{sA+3}], s30 offen offset:{k*512} lds", tag="x")
    stamp(a, cfg, "p0_xissued")
    a(f"s_load_dword s{sEP}, s[{PTR['ws']}:{PTR['ws']+1}], {WS_EPOCH}")
    a(f"v_lshrrev_b32 v{vEhi}, 2, v{vE}")
    a(f"v_and_b32 v{vElo}, 3, v{vE}")
    a(f"v_and_b32 v{vChunk}, 2, v{vE}")
    a(f"v_xor_b32 v{vChunk}, v{vChunk}, v{vPp}")
    a(f"v_lshlrev_b32 v{vChunk}, 4, v{vChunk}")
    a("s_mul_i32 s41, s41, s43")
    a(f"v_mad_u32_u24 v10, v{vElo}, s43, v{vChunk}")
    a(f"v_mad_u32_u24 v10, v{vEhi}, s41, v10")
    a("v_xor_b32 v11, 64, v10")
    a("s_mul_i32 s38, s38, s43")
    a("s_lshl_b32 s36, s42, 7")
    a("s_add_u32 s38, s38, s36")
    a("s_mul_i32 s39, s39, s43")
    a("s_mul_i32 s40, s40, s43")
    a(f"s_lshl_b32 s46, s{sW}, 12")
    stamp(a, cfg, "p0_preuaissue")
    for g4 in range(4):
        a(f"s_add_u32 m0, s46, {P0_UA + g4*1024}")
        if g4 == 0: so = "s38"
        elif g4 == 1: a("s_add_u32 s36, s38, s40"); so = "s36"
        elif g4 == 2: a("s_add_u32 s38, s38, s39"); so = "s38"
        else: a("s_add_u32 s36, s38, s40"); so = "s36"
        a(f"buffer_load_dwordx4 v{10 + (g4 & 1)}, s[{sB}:{sB+3}], {so} offen lds", tag="ua")
    stamp(a, cfg, "p0_issued")
    if cfg.prefetch_code:
        a("s_getpc_b64 s[16:17]")
        a.label("L_pc")
        a("s_mov_b32 s18, L_end-L_pc")
        a("s_mov_b32 s19, 0x20000")
        a("s_lshr_b32 s36, s2, 3")
        a("s_lshl_b32 s36, s36, 2")
        a(f"s_add_u32 s36, s36, s{sW}")
        a("s_lshl_b32 s36, s36, 9")
        a(f"v_and_b32 v12, 3, v{vL}")
        a("v_lshlrev_b32 v12, 7, v12")
        a("buffer_load_dword v13, v12, s[16:19], s36 offen", tag="pf")
    vTR = 16
    a(f"v_bfe_u32 v14, v{vL}, 2, 2")
    a(f"v_lshl_add_u32 v15, v{vGq}, 3, v14")
    a("v_lshlrev_b32 v15, 7, v15")
    a(f"v_and_b32 v12, 3, v{vL}")
    a("v_lshl_add_u32 v15, v12, 3, v15")
    a("v_lshrrev_b32 v14, 1, v14")
    a(f"v_and_b32 v12, 1, v{vGq}")
    a("v_lshl_or_b32 v14, v12, 1, v14")
    a(f"v_add_u32 v15, s46, v15")
    for t in range(4):
        a(f"v_xor_b32 v12, {t}, v14")
        a(f"v_lshl_add_u32 v{vTR+t}, v12, 5, v15")
    a("s_lshl_b32 s36, s43, 3")
    a(f"v_lshlrev_b32 v20, 4, v{vC}")
    a(f"v_mad_u32_u24 v21, v{vGq}, s36, v20")
    a("s_mul_i32 s36, s36, s35")
    a("s_lshl_b32 s36, s36, 2")
    a("s_add_u32 s44, s44, s36")
    a("s_lshl_b32 s36, s42, 10")
    a("s_add_u32 s44, s44, s36")
    a(f"v_xor_b32 v22, v{vE}, v{vPp}")
    a("v_lshlrev_b32 v22, 4, v22")
    a(f"v_lshl_add_u32 v22, v{vPp}, 7, v22")
    a("v_add_u32 v22, s45, v22")
    a(f"v_lshlrev_b32 v23, 8, v{vE}")
    a(f"v_lshl_add_u32 v23, v{vPp}, 4, v23")
    a(f"s_lshr_b32 s36, s{sU}, 1")
    a("s_mul_i32 s47, s36, 20480")
    a("s_lshl_b32 s36, s32, 11")
    a("s_add_u32 s47, s47, s36")
    a(f"s_lshl_b32 s36, s{sP}, 7")
    a("s_add_u32 s47, s47, s36")
    a(f"s_add_u32 s47, s47, {WS_XN}")
    a(f"v_lshrrev_b32 v24, 5, v{vL}")
    a(f"v_lshl_add_u32 v24, v{vPp}, 1, v24")
    a(f"v_lshlrev_b32 v24, 4, v24")
    a(f"s_lshl_b32 s36, s{sW}, 2")
    a("v_add_u32 v24, s36, v24")
    a(f"v_lshlrev_b32 v25, 5, v{vPp}")
    XR, XF = 32, 48
    stamp(a, cfg, "p0_prex")
    a.wait_vm("x")
    stamp(a, cfg, "p0_x_landed")
    for k in range(3):
        a(f"ds_read_b128 v[{XR+4*k}:{XR+4*k+3}], v22 offset:{P0_X + k*4096}")
    for k in range(12):
        a(f"v_lshlrev_b32 v{XF+2*k}, 16, v{XR+k}")
        a(f"v_and_b32 v{XF+2*k+1}, 0xffff0000, v{XR+k}")
    a(f"v_add_f32 v26, v{XF}, v{XF+1}")
    a(f"v_mul_f32 v27, v{XF}, v{XF}")
    a(f"v_add_f32 v28, v{XF+2}, v{XF+3}")
    a(f"v_mul_f32 v29, v{XF+1}, v{XF+1}")
    for k in range(2, 24):
        if k >= 4: a(f"v_add_f32 v{26 + 2*(k&1)}, v{26 + 2*(k&1)}, v{XF+k}")
        a(f"v_fmac_f32 v{27 + 2*(k&1)}, v{XF+k}, v{XF+k}")
    a("v_add_f32 v26, v26, v28")
    a("v_add_f32 v27, v27, v29")
    a("v_add_f32_dpp v26, v26, v26 row_ror:8 row_mask:0xf bank_mask:0xf")
    a("v_add_f32_dpp v27, v27, v27 row_ror:8 row_mask:0xf bank_mask:0xf")
    a("v_permlane32_swap_b32 v26, v27")
    a("v_add_f32 v26, v26, v27")
    a("v_mov_b32 v27, v26")
    a("v_permlane16_swap_b32 v27, v26")
    a("v_add_f32 v26, v26, v27")
    a(f"ds_write_b32 v24, v26 offset:{P0_SX}")
    UF = 80
    stamp(a, cfg, "p0_preua")
    a.wait_vm("ua")
    stamp(a, cfg, "p0_ua_landed")
    unit_trreads(a, UF, vTR, P0_UA)
    a.wait_lg()
    a("s_barrier")
    a(f"ds_read_b128 v[28:31], v25 offset:{P0_SX}")
    a(f"ds_read_b128 v[44:47], v25 offset:{P0_SX+16}")
    for t in range(4):
        a(f"buffer_store_dwordx4 v[{UF+4*t}:{UF+4*t+3}], v21, s[{sWS}:{sWS+3}], s44 offen offset:{t*256} sc1", tag="sa")
    a("v_add_f32 v28, v28, v29")
    a("v_add_f32 v30, v30, v31")
    a("v_add_f32 v44, v44, v45")
    a("v_add_f32 v46, v46, v47")
    a("v_add_f32 v28, v28, v30")
    a("v_add_f32 v44, v44, v46")
    a(f"v_mul_f32 v28, {f32(1.0/D)}, v28")
    a(f"v_mul_f32 v44, {f32(1.0/D)}, v44")
    a("v_fma_f32 v44, -v28, v28, v44")
    a("v_max_f32 v44, 0, v44")
    a(f"v_add_f32 v44, {f32(1e-5)}, v44")
    a("v_rsq_f32 v44, v44")
    a("v_mul_f32 v28, v28, v44")
    for k in range(3):
        for q in range(8):
            a(f"v_fma_f32 v{XF+8*k+q}, v{XF+8*k+q}, v44, -v28")
        for q in range(4):
            a(f"v_cvt_pk_bf16_f32 v{XR+4*k+q}, v{XF+8*k+2*q}, v{XF+8*k+2*q+1}")
        if k == 1: a("s_add_u32 s47, s47, 8192")
        if k == 2:
            a("s_add_u32 s47, s47, 8192")
            a("s_cmp_lt_u32 s32, 2")
            a(f"s_cselect_b32 s47, s47, {OOB}")
        a(f"buffer_store_dwordx4 v[{XR+4*k}:{XR+4*k+3}], v23, s[{sWS}:{sWS+3}], s47 offen sc1", tag="sa")
    stamp(a, cfg, "p0_a_stored")
    a(f"s_add_u32 s{sEP}, s{sEP}, {EPOCH_STEP}")
    a(f"s_getreg_b32 s{sFAST}, hwreg(HW_REG_XCC_ID, 0, 4)")
    a(f"s_and_b32 s30, s{sW}, 1")
    a(f"s_lshl_b32 s31, s{sU}, 1")
    a("s_add_u32 s30, s30, s31")
    a(f"s_lshl_b32 s46, s{sW}, 13")
    a(f"s_lshl_b32 s31, s{sW}, 12")
    for t in range(4): a(f"v_add_u32 v{vTR+t}, s31, v{vTR+t}")
    a(f"s_cmp_lt_u32 s{sW}, 2")
    a("s_cbranch_scc0 L_p0_roleY")
    a.known_drained(lg=False)
    sdiv(a, 34, 30, 20, 511)
    a("s_mul_i32 s35, s34, 20")
    a("s_sub_u32 s35, s30, s35")
    srd(a, sA, "w1", D*F*2)
    srd(a, sB, "w3", D*F*2)
    a("s_cmp_lt_u32 s30, 480")
    a(f"s_cselect_b32 s{sA+2}, s{sA+2}, 0")
    a(f"s_cselect_b32 s{sB+2}, s{sB+2}, 0")
    a(f"s_mov_b32 s44, {WS_W13}")
    a(f"s_cselect_b32 s44, s44, {OOB}")
    a("s_movk_i32 s43, 3072")
    a(f"v_mad_u32_u24 v9, v{vElo}, s43, v{vChunk}")
    a("s_lshl_b32 s42, s34, 7")
    for g4 in range(4):
        a("s_lshl_b32 s36, s35, 2")
        a(f"s_add_u32 s36, s36, {g4}")
        sdiv(a, 37, 36, 10, 127)
        a("s_mul_i32 s38, s37, 10")
        a("s_sub_u32 s38, s36, s38")
        a("s_mul_i32 s37, s37, 80")
        a("s_lshr_b32 s39, s38, 2")
        a("s_lshl_b32 s39, s39, 5")
        a("s_and_b32 s40, s38, 3")
        a("s_lshl_b32 s40, s40, 2")
        a("s_add_u32 s39, s39, s40")
        a("s_lshl_b32 s40, s38, 3")
        a("s_cmp_lt_u32 s38, 8")
        a("s_cselect_b32 s39, s39, s40")
        a(f"s_mov_b32 s41, {16*3072}")
        a(f"s_cselect_b32 s41, s41, {4*3072}")
        a("s_add_u32 s39, s39, s37")
        a("s_mul_i32 s39, s39, 3072")
        a("s_add_u32 s39, s39, s42")
        a(f"v_mad_u32_u24 v10, v{vEhi}, s41, v9")
        if g4 & 1: a("v_xor_b32 v10, 64, v10")
        a(f"s_add_u32 m0, s46, {P0_UB + g4*1024}")
        a(f"buffer_load_dwordx4 v10, s[{sA}:{sA+3}], s39 offen lds", tag="ub")
        a(f"s_add_u32 m0, s46, {P0_UB + 4096 + g4*1024}")
        a(f"buffer_load_dwordx4 v10, s[{sB}:{sB+3}], s39 offen lds", tag="ub")
    a("s_waitcnt vmcnt(8)")
    a("s_barrier")
    a(f"s_lshl_b32 s36, s{sU}, 7")
    a(f"s_add_u32 s36, s36, {WS_FA}")
    a(f"s_cmp_eq_u32 s{sW}, 0")
    a(f"s_cselect_b32 s36, s36, {OOB}")
    a(f"v_mov_b32 v12, s{sEP}")
    a(f"v_mov_b32 v13, s{sFAST}")
    a("s_mov_b64 exec, 1")
    a(f"buffer_store_dwordx2 v[12:13], off, s[{sWS}:{sWS+3}], s36 sc1")
    a("s_mov_b64 exec, -1")
    stamp(a, cfg, "p0_flagA")
    a(f"s_mov_b32 s36, {49152}")
    a(f"v_mad_u32_u24 v21, v{vGq}, s36, v20")
    a(f"s_mul_i32 s36, s35, {4*49152}")
    a("s_add_u32 s44, s44, s36")
    a("s_lshl_b32 s36, s34, 11")
    a("s_add_u32 s44, s44, s36")
    a(f"v_and_b32 v12, 2, v{vL}")
    a("v_cmp_eq_u32 vcc, 0, v12")
    a("s_mov_b64 s[48:49], vcc")
    a.wait_vm("ub")
    stamp(a, cfg, "p0_b_landed")
    GF, UFR, XO = 32, 48, 64
    unit_trreads(a, GF, vTR, P0_UB)
    unit_trreads(a, UFR, vTR, P0_UB + 4096)
    for t in range(4):
        for r in range(4):
            a(f"v_cndmask_b32_dpp v{XO+8*t+r}, v{UFR+4*t+r}, v{GF+4*t+r}, vcc quad_perm:[0,1,0,1] row_mask:0xf bank_mask:0xf")
        a(f"buffer_store_dwordx4 v[{XO+8*t}:{XO+8*t+3}], v21, s[{sWS}:{sWS+3}], s44 offen offset:{t*512} sc1")
    a("s_not_b64 vcc, vcc")
    for t in range(4):
        for r in range(4):
            a(f"v_cndmask_b32_dpp v{XO+8*t+4+r}, v{GF+4*t+r}, v{UFR+4*t+r}, vcc quad_perm:[2,3,2,3] row_mask:0xf bank_mask:0xf")
        a(f"buffer_store_dwordx4 v[{XO+8*t+4}:{XO+8*t+7}], v21, s[{sWS}:{sWS+3}], s44 offen offset:{t*512+256} sc1")
    a("s_branch L_p0_join")
    a.label("L_p0_roleY")
    a.known_drained(lg=False)
    if cfg.stamps and getattr(cfg, "only", None) is None: _stamp_n[0] -= 2; del cfg.stamp_names[-2:]
    sdiv(a, 34, 30, 48, 511)
    a("s_mul_i32 s35, s34, 48")
    a("s_sub_u32 s35, s30, s35")
    srd(a, sA, "w2", D*F*2)
    a("s_cmp_lt_u32 s30, 480")
    a(f"s_cselect_b32 s{sA+2}, s{sA+2}, 0")
    a(f"s_mov_b32 s44, {WS_W2}")
    a(f"s_cselect_b32 s44, s44, {OOB}")
    a(f"v_lshrrev_b32 v9, 1, v{vE}")
    a(f"v_and_b32 v10, 1, v{vE}")
    a("v_lshl_add_u32 v9, v9, 2, v10")
    a("s_movk_i32 s43, 1280")
    a(f"v_mad_u32_u24 v10, v9, s43, v{vChunk}")
    a("v_xor_b32 v11, 64, v10")
    a(f"s_mul_i32 s38, s35, {32*1280}")
    a("s_lshl_b32 s36, s34, 7")
    a("s_add_u32 s38, s38, s36")
    for g4 in range(4):
        a(f"s_add_u32 s36, s38, {(16*(g4>>1) + 2*(g4&1))*1280}")
        a(f"s_add_u32 m0, s46, {P0_UB + g4*1024}")
        a(f"buffer_load_dwordx4 v{10 + (g4&1)}, s[{sA}:{sA+3}], s36 offen lds", tag="ub")
    a("s_waitcnt vmcnt(4)")
    a("s_barrier")
    stamp(a, cfg, "p0_flagA")
    a("s_movk_i32 s36, 10240")
    a(f"v_mad_u32_u24 v21, v{vGq}, s36, v20")
    a(f"s_mul_i32 s36, s35, {4*10240}")
    a("s_add_u32 s44, s44, s36")
    a("s_lshl_b32 s36, s34, 10")
    a("s_add_u32 s44, s44, s36")
    a.wait_vm("ub")
    stamp(a, cfg, "p0_b_landed")
    unit_trreads(a, GF, vTR, P0_UB)
    for t in range(4):
        a(f"buffer_store_dwordx4 v[{GF+4*t}:{GF+4*t+3}], v21, s[{sWS}:{sWS+3}], s44 offen offset:{t*256} sc1")
    a.label("L_p0_join")
    a.known_drained()
    stamp(a, cfg, "p0_done")

def build(cfg):
    _stamp_n[0] = 0
    cfg.stamp_names = []
    a = Prog()
    setup(a, cfg)
    phase0(a, cfg)
    import gen1b
    for k, ph in enumerate(gen1b.PHASES):
        if cfg.stop > k: ph(a, cfg)
    a.label("L_fin")
    stamp_flush(a, cfg)
    a("s_waitcnt vmcnt(0)")
    a.label("L_end")
    body = render(finalize(a))
    hdr = open("cdna_kernels/" + NAME + ".s.ref").read().split("; @launch")[0]
    return hdr + f"""; @launch grid=(256,1,1) block=(256,1,1) lds={LDS_BYTES}
.amdgcn_target "amdgcn-amd-amdhsa--gfx950"
.text
.globl {KN}
.p2align 8
.type {KN},@function
{KN}:
{body}
    s_endpgm
.section .rodata,"a"
.p2align 6
.amdhsa_kernel {KN}
  .amdhsa_next_free_vgpr 512
  .amdhsa_next_free_sgpr 102
  .amdhsa_accum_offset 256
  .amdhsa_group_segment_fixed_size 0
  .amdhsa_kernarg_size 80
  .amdhsa_user_sgpr_count 2
  .amdhsa_user_sgpr_kernarg_segment_ptr 1
  .amdhsa_system_sgpr_workgroup_id_x 1
.end_amdhsa_kernel
"""

if __name__ == "__main__":
    import argparse, json
    ap = argparse.ArgumentParser()
    ap.add_argument("-o", default="k1.s")
    ap.add_argument("--stop", type=int, default=99)
    ap.add_argument("--stamps", action="store_true")
    ap.add_argument("--slow", action="store_true")
    ap.add_argument("--set", action="append", default=[])
    ap.add_argument("--only", default=None)
    args = ap.parse_args()
    import gen1
    cfg = gen1.Cfg(); cfg.stop = args.stop; cfg.stamps = args.stamps; cfg.force_slow = args.slow; cfg.prefetch_code = True
    if args.only: cfg.only = ["start"] + args.only.split(","); cfg.stamps = True; assert len(cfg.only) <= 7
    for kv in args.set:
        k, v = kv.split("="); setattr(cfg, k, int(v))
    txt = gen1.build(cfg)
    if cfg.stamps: txt = "; stamps: " + json.dumps(cfg.stamp_names) + "\n" + txt
    open(args.o, "w").write(txt)
```
